```python
import torch

def _softmax(x, axis=-1):
    return torch.softmax(x, dim=axis)

def _gelu(x):
    return torch.nn.functional.gelu(x, approximate='tanh')

def _silu(x):
    return torch.nn.functional.silu(x)

def _sigmoid(x):
    return torch.sigmoid(x)

def _layernorm(x, axis=-1, eps=1e-05):
    m = x.mean(dim=axis, keepdim=True)
    v = x.var(dim=axis, keepdim=True, unbiased=False)
    return (x - m) / torch.sqrt(v + eps)

def _scatter_add(tgt, idx, src, axis=0):
    return tgt.clone().index_add_(axis, idx, src)

def _segment_sum(src, seg, n):
    out = torch.zeros((n,) + src.shape[1:], dtype=src.dtype)
    return out.index_add_(0, seg, src)

def _pad(x, pw):
    flat = tuple((v for pair in reversed(pw) for v in pair))
    return torch.nn.functional.pad(x, flat)
kernel_name = 'standalone__tree_speculative_verify_tree_attention_over_candidate_token_tree__sampling'

def setup_inputs():

    _w = lambda a: (lambda t: t.to(torch.bfloat16) if t.is_floating_point() else t)(torch.as_tensor(a))
    B, Hq, Hkv, T, C, D = (32, 32, 8, 1, 2048, 128)
    tree_mask = torch.zeros((B, T, T), dtype=float)
    for b in range(B):
        parent = torch.zeros(T, dtype=torch.int64)
        for i in range(1, T):
            parent[i] = int(torch.randint(0, i, (1,)).item())
        for i in range(T):
            j = i
            tree_mask[b, i, j] = 1.0
            while j > 0:
                j = parent[j]
                tree_mask[b, i, j] = 1.0
    return {'q': _w((lambda *s: torch.randn(*s, dtype=torch.bfloat16) * 0.8)(B, Hq, T, D)), 'k_cache': _w((lambda *s: torch.randn(*s, dtype=torch.bfloat16) * 0.8)(B, Hkv, C, D)), 'v_cache': _w((lambda *s: torch.randn(*s, dtype=torch.bfloat16) * 0.05)(B, Hkv, C, D)), 'k_tree': _w((lambda *s: torch.randn(*s, dtype=torch.bfloat16) * 0.8)(B, Hkv, T, D)), 'v_tree': _w((lambda *s: torch.randn(*s, dtype=torch.bfloat16) * 0.05)(B, Hkv, T, D)), 'tree_mask': _w(tree_mask)}

def reference(q, k_cache, v_cache, k_tree, v_tree, tree_mask):
    B, Hq, T, D = q.shape
    Hkv, C = (k_cache.shape[1], k_cache.shape[2])
    rep = Hq // Hkv
    kc = (lambda x, n, axis: torch.repeat_interleave(x, n, dim=axis))(k_cache, rep, axis=1)
    vc = (lambda x, n, axis: torch.repeat_interleave(x, n, dim=axis))(v_cache, rep, axis=1)
    kt = (lambda x, n, axis: torch.repeat_interleave(x, n, dim=axis))(k_tree, rep, axis=1)
    vt = (lambda x, n, axis: torch.repeat_interleave(x, n, dim=axis))(v_tree, rep, axis=1)
    k = torch.concatenate([kc, kt], axis=2)
    v = torch.concatenate([vc, vt], axis=2)
    scale = D ** (-0.5)
    scores = torch.einsum('bhqd,bhkd->bhqk', q, k) * scale
    ctx_mask = torch.ones((B, 1, T, C), dtype=scores.dtype)
    tm = tree_mask[:, None, :, :].clone()
    full_mask = torch.concatenate([ctx_mask, tm], axis=-1)
    scores = scores + (1.0 - full_mask) * -1000000000.0
    p = _softmax(scores, axis=-1)
    return torch.einsum('bhqk,bhkd->bhqd', p, v)
```

```python
import sys, math, struct
KNAME = "standalone__tree_speculative_verify_tree_attention_over_candidate_token_tree__sampling_kernel"

def f32hex(x):
    return "0x%08x" % struct.unpack("<I", struct.pack("<f", x))[0]

HEADER = """; Kernarg layout for this problem (72 bytes, ptrs only, base s[0:1]):
"""

def gen(G=256, W=8, NBUF=2, interleave=True, kflags="", vflags="", skiprescale=True, lds_pad=0, nocompute=False, rot=0, pad=0, stamps=False):
    L = []
    e = L.append
    NST = 2048 // W // 32
    assert NST % NBUF == 0
    lds = max(W * 2048 + W * 32, lds_pad)
    vQ = 4
    vO = 20
    vT = 52
    vS = 68
    vP = 76
    vU = 80
    vM, vL, vA, vX, vY, vNM = 96, 97, 98, 100, 101, 102
    vKoff, vVoff = 1, 2
    vB = 104
    nv = vB + NBUF * 64
    assert nv <= 256
    def KB(b): return vB + b * 64
    def VB(b): return vB + b * 64 + 32
    sK, sV, sQ, sO_, sT = 20, 24, 28, 32, 36
    sW, sOff, sOff2, sIt, sC, sSelLo, sSelHi, sTmp = 40, 41, 42, 43, 44, 45, 46, 47
    c = math.log2(math.e) / math.sqrt(128.0)
    wstride = 8192 if interleave else NST * 8192
    istride = W * 8192 if interleave else 8192

    e(HEADER.rstrip("\n"))
    e("; @launch grid=(%d,1,1) block=(%d,1,1) lds=%d" % (G, W * 64, lds))
    e('.amdgcn_target "amdgcn-amd-amdhsa--gfx950"')
    e(".text")
    e(".globl %s" % KNAME)
    e(".p2align 8")
    e(".type %s,@function" % KNAME)
    e("%s:" % KNAME)
    e("  s_cmp_ge_u32 s2, 256")
    e("  s_cbranch_scc1 L_end")
    e("  s_load_dwordx16 s[4:19], s[0:1], 0")
    if pad or stamps:
        e("  s_memrealtime s[50:51]")
    e("  v_lshrrev_b32 v3, 6, v0")
    e("  v_and_b32 v0, 63, v0")
    e("  v_readfirstlane_b32 s%d, v3" % sW)
    e("  v_lshlrev_b32 v%d, 4, v0" % vVoff)
    e("  v_and_b32 v%d, 3, v0" % vX)
    e("  v_lshlrev_b32 v%d, 10, v%d" % (vX, vX))
    e("  v_bfe_u32 v%d, v0, 2, 2" % vY)
    e("  v_lshl_add_u32 v%d, v%d, 8, v%d" % (vX, vY, vX))
    e("  v_lshrrev_b32 v%d, 4, v0" % vY)
    e("  v_lshl_add_u32 v%d, v%d, 4, v%d" % (vKoff, vY, vX))
    e("  v_and_b32 v%d, 15, v0" % vX)
    e("  v_lshlrev_b32 v%d, 8, v%d" % (vX, vX))
    e("  v_lshl_add_u32 v3, v%d, 4, v%d" % (vY, vX))
    e("  s_lshl_b32 s%d, s2, 19" % sTmp)
    e("  s_mul_i32 s%d, s%d, %d" % (sOff, sW, wstride))
    e("  s_mov_b32 s%d, 0x00020000" % (sK + 3))
    e("  s_mov_b32 s%d, 0x00020000" % (sV + 3))
    e("  s_mov_b32 s%d, 0x00020000" % (sQ + 3))
    e("  s_mov_b32 s%d, 0x00020000" % (sO_ + 3))
    e("  s_mov_b32 s%d, 0x00020000" % (sT + 3))
    if interleave:
        e("  s_mov_b32 s%d, 0x80000" % (sK + 2))
        e("  s_mov_b32 s%d, 0x80000" % (sV + 2))
    else:
        e("  s_add_u32 s%d, s%d, %d" % (sK + 2, sOff, wstride))
        e("  s_mov_b32 s%d, s%d" % (sV + 2, sK + 2))
    e("  s_mov_b32 s%d, 1024" % (sQ + 2))
    e("  s_mov_b32 s%d, 1024" % (sO_ + 2))
    e("  s_mov_b32 s%d, 256" % (sT + 2))
    e("  s_add_u32 s%d, s%d, 4096" % (sOff2, sOff))
    e("  s_waitcnt lgkmcnt(0)")
    if stamps:
        e("  s_memrealtime s[60:61]")
    e("  s_add_u32 s%d, s6, s%d" % (sK, sTmp))
    e("  s_addc_u32 s%d, s7, 0" % (sK + 1))
    e("  s_add_u32 s%d, s8, s%d" % (sV, sTmp))
    e("  s_addc_u32 s%d, s9, 0" % (sV + 1))

    def loadK(b):
        for t in range(2):
            for j in range(4):
                r = KB(b) + t * 16 + j * 4
                e("  buffer_load_dwordx4 v[%d:%d], v%d, s[%d:%d], s%d offen offset:%d %s" %
                  (r, r + 3, vKoff, sK, sK + 3, sOff if t == 0 else sOff2, j * 64, kflags))
    def loadV(b):
        for j in range(8):
            r = VB(b) + j * 4
            e("  buffer_load_dwordx4 v[%d:%d], v%d, s[%d:%d], s%d offen offset:%d %s" %
              (r, r + 3, vVoff, sV, sV + 3, sOff if j < 4 else sOff2, (j & 3) * 1024, vflags))
    def advance():
        e("  s_add_u32 s%d, s%d, %d" % (sOff, sOff, istride))
        e("  s_add_u32 s%d, s%d, %d" % (sOff2, sOff2, istride))

    loadK(0)
    e("  s_lshl_b32 s%d, s2, 10" % sTmp)
    e("  s_add_u32 s%d, s4, s%d" % (sQ, sTmp))
    e("  s_addc_u32 s%d, s5, 0" % (sQ + 1))
    e("  s_add_u32 s%d, s16, s%d" % (sO_, sTmp))
    e("  s_addc_u32 s%d, s17, 0" % (sO_ + 1))
    for j in range(4):
        e("  buffer_load_dwordx4 v[%d:%d], v3, s[%d:%d], 0 offen offset:%d" % (vQ + 4 * j, vQ + 4 * j + 3, sQ, sQ + 3, j * 64))
    e("  s_cmp_eq_u32 s%d, 0" % sW)
    e("  s_cbranch_scc0 L_notree_ld")
    e("  s_lshl_b32 s%d, s2, 8" % sTmp)
    e("  s_add_u32 s%d, s10, s%d" % (sT, sTmp))
    e("  s_addc_u32 s%d, s11, 0" % (sT + 1))
    for j in range(4):
        e("  buffer_load_dwordx4 v[%d:%d], v3, s[%d:%d], 0 offen offset:%d" % (vT + 4 * j, vT + 4 * j + 3, sT, sT + 3, j * 64))
    e("  s_add_u32 s%d, s12, s%d" % (sT, sTmp))
    e("  s_addc_u32 s%d, s13, 0" % (sT + 1))
    e("  v_lshlrev_b32 v%d, 6, v%d" % (vX, vY))
    for r in range(4):
        e("  buffer_load_dwordx4 v[%d:%d], v%d, s[%d:%d], 0 offen offset:%d" % (vU + 4 * r, vU + 4 * r + 3, vX, sT, sT + 3, r * 16))
    e("  s_mov_b32 s%d, s14" % sT)
    e("  s_mov_b32 s%d, s15" % (sT + 1))
    e("  s_mov_b32 s%d, 64" % (sT + 2))
    e("  s_lshr_b32 s%d, s2, 3" % sTmp)
    e("  s_lshl_b32 s%d, s%d, 1" % (sTmp, sTmp))
    e("  buffer_load_ushort v%d, off, s[%d:%d], s%d" % (vNM, sT, sT + 3, sTmp))
    e("L_notree_ld:")
    loadV(0)
    for b in range(1, NBUF):
        advance()
        loadK(b)
        loadV(b)
    advance()
    inflight_after = 8 + (NBUF - 1) * 16
    e("  s_mov_b32 s%d, %s" % (sC, f32hex(c)))
    e("  s_mov_b32 s%d, 0x05040100" % sSelLo)
    e("  s_mov_b32 s%d, 0x07060302" % sSelHi)
    e("  s_mov_b32 s%d, 0" % sIt)
    e("  v_mov_b32 v%d, %s" % (vM, f32hex(-3.0e38)))
    e("  v_mov_b32 v%d, 0" % vL)
    for i in range(32):
        e("  v_mov_b32 v%d, 0" % (vO + i))
    if stamps:
        e("  s_memrealtime s[62:63]")
        e("  s_waitcnt vmcnt(%d)" % inflight_after)
        e("  s_memrealtime s[56:57]")
        e("  s_waitcnt lgkmcnt(0)")
    e("  s_cmp_eq_u32 s%d, 0" % sW)
    e("  s_cbranch_scc0 L_loop")
    e("  s_waitcnt vmcnt(%d)" % inflight_after)
    for j in range(4):
        e("  v_mfma_f32_16x16x32_bf16 v[%d:%d], v[%d:%d], v[%d:%d], %s" %
          (vS, vS + 3, vT + 4 * j, vT + 4 * j + 3, vQ + 4 * j, vQ + 4 * j + 3, "0" if j == 0 else "v[%d:%d]" % (vS, vS + 3)))
    for r in range(4):
        for w in range(4):
            e("  v_lshlrev_b32 v%d, 16, v%d" % (vO + (2 * w) * 4 + r, vU + 4 * r + w))
            e("  v_and_b32 v%d, 0xffff0000, v%d" % (vO + (2 * w + 1) * 4 + r, vU + 4 * r + w))
    e("  v_lshlrev_b32 v%d, 16, v%d" % (vNM, vNM))
    e("  v_sub_f32 v%d, 1.0, v%d" % (vNM, vNM))
    e("  v_mul_f32 v%d, %s, v%d" % (vNM, f32hex(-1.0e9 * math.log2(math.e)), vNM))
    e("  v_fma_f32 v%d, v%d, s%d, v%d" % (vX, vS, sC, vNM))
    e("  v_cmp_gt_u32 vcc, 16, v0")
    e("  s_nop 1")
    e("  v_cndmask_b32 v%d, v%d, v%d, vcc" % (vM, vM, vX))
    e("  v_cndmask_b32 v%d, 0, 1.0, vcc" % vL)
    e("  v_mov_b32 v%d, v%d" % (vX, vM))
    e("  s_nop 1")
    e("  v_permlane32_swap_b32 v%d, v%d" % (vM, vX))
    e("  s_nop 1")
    e("  v_max_f32 v%d, v%d, v%d" % (vM, vM, vX))
    e("  v_mov_b32 v%d, v%d" % (vX, vM))
    e("  s_nop 1")
    e("  v_permlane16_swap_b32 v%d, v%d" % (vM, vX))
    e("  s_nop 1")
    e("  v_max_f32 v%d, v%d, v%d" % (vM, vM, vX))
    e("L_loop:")
    for b in range(NBUF):
        e("  s_waitcnt vmcnt(%d)" % inflight_after)
        if not nocompute:
            for j in range(4):
                for t in range(2):
                    r = KB(b) + t * 16 + j * 4
                    d = vS + 4 * t
                    e("  v_mfma_f32_16x16x32_bf16 v[%d:%d], v[%d:%d], v[%d:%d], %s" %
                      (d, d + 3, r, r + 3, vQ + 4 * j, vQ + 4 * j + 3, "0" if j == 0 else "v[%d:%d]" % (d, d + 3)))
        loadK(b)
        if not nocompute:
            e("  s_nop 1")
            e("  v_max3_f32 v%d, v%d, v%d, v%d" % (vX, vS, vS + 1, vS + 2))
            e("  v_max3_f32 v%d, v%d, v%d, v%d" % (vY, vS + 3, vS + 4, vS + 5))
            e("  v_max3_f32 v%d, v%d, v%d, v%d" % (vX, vX, vS + 6, vS + 7))
            e("  v_max_f32 v%d, v%d, v%d" % (vX, vX, vY))
            e("  v_mov_b32 v%d, v%d" % (vY, vX))
            e("  s_nop 1")
            e("  v_permlane32_swap_b32 v%d, v%d" % (vX, vY))
            e("  s_nop 1")
            e("  v_max_f32 v%d, v%d, v%d" % (vX, vX, vY))
            e("  v_mov_b32 v%d, v%d" % (vY, vX))
            e("  s_nop 1")
            e("  v_permlane16_swap_b32 v%d, v%d" % (vX, vY))
            e("  s_nop 1")
            e("  v_max_f32 v%d, v%d, v%d" % (vX, vX, vY))
            e("  v_mul_f32 v%d, s%d, v%d" % (vX, sC, vX))
            if skiprescale:
                e("  v_cmp_gt_f32 vcc, v%d, v%d" % (vX, vM))
                e("  s_cbranch_vccz L_nors%d" % b)
            e("  v_max_f32 v%d, v%d, v%d" % (vX, vX, vM))
            e("  v_sub_f32 v%d, v%d, v%d" % (vA, vM, vX))
            e("  v_exp_f32 v%d, v%d" % (vA, vA))
            e("  v_mov_b32 v%d, v%d" % (vM, vX))
            e("  v_mul_f32 v%d, v%d, v%d" % (vL, vL, vA))
            for i in range(16):
                e("  v_pk_mul_f32 v[%d:%d], v[%d:%d], v[%d:%d] op_sel_hi:[1,0]" % (vO + 2 * i, vO + 2 * i + 1, vO + 2 * i, vO + 2 * i + 1, vA, vA + 1))
            if skiprescale:
                e("L_nors%d:" % b)
            for i in range(8):
                e("  v_fma_f32 v%d, v%d, s%d, -v%d" % (vS + i, vS + i, sC, vM))
            for i in range(8):
                e("  v_exp_f32 v%d, v%d" % (vS + i, vS + i))
            e("  s_nop 0")
            for u in range(4):
                e("  v_cvt_pk_bf16_f32 v%d, v%d, v%d" % (vP + u, vS + 2 * u, vS + 2 * u + 1))
            e("  v_add_f32 v%d, v%d, v%d" % (vX, vS, vS + 1))
            e("  v_add_f32 v%d, v%d, v%d" % (vY, vS + 2, vS + 3))
            e("  v_add_f32 v%d, v%d, v%d" % (vX, vX, vS + 4))
            e("  v_add_f32 v%d, v%d, v%d" % (vY, vY, vS + 5))
            e("  v_add_f32 v%d, v%d, v%d" % (vX, vX, vS + 6))
            e("  v_add_f32 v%d, v%d, v%d" % (vY, vY, vS + 7))
            e("  v_add_f32 v%d, v%d, v%d" % (vL, vL, vX))
            e("  v_add_f32 v%d, v%d, v%d" % (vL, vL, vY))
        e("  s_waitcnt vmcnt(%d)" % inflight_after)
        if not nocompute:
            def perms(w):
                tb = vT + (w & 1) * 8
                for u in range(4):
                    r0 = VB(b) + (2 * u) * 4 + w
                    r1 = VB(b) + (2 * u + 1) * 4 + w
                    e("  v_perm_b32 v%d, v%d, v%d, s%d" % (tb + u, r1, r0, sSelLo))
                for u in range(4):
                    r0 = VB(b) + (2 * u) * 4 + w
                    r1 = VB(b) + (2 * u + 1) * 4 + w
                    e("  v_perm_b32 v%d, v%d, v%d, s%d" % (tb + 4 + u, r1, r0, sSelHi))
            def pv(w):
                tb = vT + (w & 1) * 8
                for hh in range(2):
                    o = vO + (2 * w + hh) * 4
                    e("  v_mfma_f32_16x16x32_bf16 v[%d:%d], v[%d:%d], v[%d:%d], v[%d:%d]" %
                      (o, o + 3, tb + 4 * hh, tb + 4 * hh + 3, vP, vP + 3, o, o + 3))
            perms(0)
            perms(1)
            pv(0)
            perms(2)
            pv(1)
            perms(3)
            pv(2)
            e("  s_nop 1")
            pv(3)
        loadV(b)
        advance()
        if stamps:
            e("  s_memrealtime s[64:65]")
            e("  s_lshl_b32 s66, s%d, %d" % (sIt, int(math.log2(NBUF))))
            e("  s_add_u32 m0, s66, %d" % b)
            e("  s_waitcnt lgkmcnt(0)")
            e("  v_writelane_b32 v103, s64, m0")
    e("  s_add_u32 s%d, s%d, 1" % (sIt, sIt))
    e("  s_cmp_lt_u32 s%d, %d" % (sIt, NST // NBUF))
    e("  s_cbranch_scc1 L_loop")
    if stamps:
        e("  s_memrealtime s[58:59]")
    e("  v_mov_b32 v%d, v%d" % (vX, vL))
    e("  s_nop 1")
    e("  v_permlane32_swap_b32 v%d, v%d" % (vL, vX))
    e("  s_nop 1")
    e("  v_add_f32 v%d, v%d, v%d" % (vL, vL, vX))
    e("  v_mov_b32 v%d, v%d" % (vX, vL))
    e("  s_nop 1")
    e("  v_permlane16_swap_b32 v%d, v%d" % (vL, vX))
    e("  s_nop 1")
    e("  v_add_f32 v%d, v%d, v%d" % (vL, vL, vX))
    e("  v_and_b32 v%d, 15, v0" % vX)
    e("  v_lshrrev_b32 v%d, 4, v0" % vY)
    e("  v_cmp_gt_u32 vcc, 4, v%d" % vX)
    e("  v_lshl_add_u32 v%d, v%d, 2, v%d" % (vY, vX, vY))
    e("  v_lshlrev_b32 v%d, 7, v%d" % (vY, vY))
    e("  s_lshl_b32 s%d, s%d, 11" % (sTmp, sW))
    e("  v_add_u32 v%d, s%d, v%d" % (vY, sTmp, vY))
    e("  s_lshl_b32 s%d, s%d, 5" % (sTmp, sW))
    e("  v_lshl_add_u32 v%d, v%d, 3, s%d" % (vX, vX, sTmp))
    e("  s_and_saveexec_b64 s[48:49], vcc")
    for jd in range(8):
        e("  ds_write_b128 v%d, v[%d:%d] offset:%d" % (vY, vO + 4 * jd, vO + 4 * jd + 3, jd * 16))
    e("  ds_write_b64 v%d, v[%d:%d] offset:%d" % (vX, vM, vL, W * 2048))
    e("  s_mov_b64 exec, s[48:49]")
    e("  s_waitcnt lgkmcnt(0)")
    e("  s_barrier")
    if W > 4:
        e("  s_cmp_ge_u32 s%d, 4" % sW)
        e("  s_cbranch_scc1 %s" % ("L_stamp" if stamps else "L_end"))
    e("  v_lshrrev_b32 v%d, 4, v0" % vX)
    e("  v_lshlrev_b32 v%d, 7, v%d" % (vX, vX))
    e("  v_and_b32 v%d, 3, v0" % vY)
    e("  v_lshl_add_u32 v%d, v%d, 5, v%d" % (vX, vY, vX))
    e("  v_bfe_u32 v%d, v0, 2, 2" % vY)
    e("  v_lshl_add_u32 v%d, v%d, 2, v%d" % (vX, vY, vX))
    e("  s_lshl_b32 s%d, s%d, 9" % (sTmp, sW))
    e("  v_add_u32 v%d, s%d, v%d" % (vX, sTmp, vX))
    e("  s_lshl_b32 s%d, s%d, 3" % (sTmp, sW))
    e("  v_mov_b32 v%d, s%d" % (vY, sTmp))
    rML = vQ
    rO = vQ + 2 * W
    assert rO + 2 * W <= vS
    for w in range(W):
        e("  ds_read_b64 v[%d:%d], v%d offset:%d" % (rML + 2 * w, rML + 2 * w + 1, vY, W * 2048 + w * 32))
    for w in range(W):
        e("  ds_read_b32 v%d, v%d offset:%d" % (rO + 2 * w, vX, w * 2048))
        e("  ds_read_b32 v%d, v%d offset:%d" % (rO + 2 * w + 1, vX, w * 2048 + 16))
    e("  s_waitcnt lgkmcnt(0)")
    e("  v_mov_b32 v%d, v%d" % (vM, rML))
    for w in range(1, W):
        e("  v_max_f32 v%d, v%d, v%d" % (vM, vM, rML + 2 * w))
    for w in range(W):
        e("  v_sub_f32 v%d, v%d, v%d" % (rML + 2 * w, rML + 2 * w, vM))
    for w in range(W):
        e("  v_exp_f32 v%d, v%d" % (rML + 2 * w, rML + 2 * w))
    e("  s_nop 0")
    e("  v_mul_f32 v%d, v%d, v%d" % (vL, rML, rML + 1))
    e("  v_mul_f32 v%d, v%d, v%d" % (vS, rML, rO))
    e("  v_mul_f32 v%d, v%d, v%d" % (vS + 1, rML, rO + 1))
    for w in range(1, W):
        e("  v_fmac_f32 v%d, v%d, v%d" % (vL, rML + 2 * w, rML + 2 * w + 1))
        e("  v_fmac_f32 v%d, v%d, v%d" % (vS, rML + 2 * w, rO + 2 * w))
        e("  v_fmac_f32 v%d, v%d, v%d" % (vS + 1, rML + 2 * w, rO + 2 * w + 1))
    e("  v_rcp_f32 v%d, v%d" % (vL, vL))
    e("  v_lshlrev_b32 v%d, 2, v0" % vX)
    e("  s_lshl_b32 s%d, s%d, 8" % (sTmp, sW))
    e("  v_mul_f32 v%d, v%d, v%d" % (vS, vS, vL))
    e("  v_mul_f32 v%d, v%d, v%d" % (vS + 1, vS + 1, vL))
    e("  v_cvt_pk_bf16_f32 v%d, v%d, v%d" % (vS, vS, vS + 1))
    e("  buffer_store_dword v%d, v%d, s[%d:%d], s%d offen" % (vS, vX, sO_, sO_ + 3, sTmp))
    if pad:
        e("L_pad:")
        e("  s_memrealtime s[52:53]")
        e("  s_waitcnt lgkmcnt(0)")
        e("  s_sub_u32 s52, s52, s50")
        e("  s_cmp_lt_u32 s52, %d" % pad)
        e("  s_cbranch_scc1 L_pad")
    if stamps:
        e("  s_waitcnt vmcnt(0)")
        e("L_stamp:")
        e("  s_memrealtime s[52:53]")
        e("  s_load_dwordx2 s[20:21], s[0:1], 64")
        e("  s_mov_b32 s22, 0x100000")
        e("  s_getreg_b32 s54, hwreg(HW_REG_XCC_ID)")
        e("  s_getreg_b32 s55, hwreg(HW_REG_HW_ID)")
        e("  s_waitcnt lgkmcnt(0)")
        e("  v_mov_b32 v4, s50")
        e("  v_mov_b32 v5, s56")
        e("  v_mov_b32 v6, s58")
        e("  v_mov_b32 v7, s52")
        e("  v_mov_b32 v8, s54")
        e("  v_mov_b32 v9, s55")
        e("  v_mov_b32 v10, s60")
        e("  v_mov_b32 v11, s62")
        e("  s_mul_i32 s47, s2, %d" % W)
        e("  s_add_u32 s47, s47, s40")
        e("  s_lshl_b32 s47, s47, 5")
        e("  v_lshlrev_b32 v12, 2, v0")
        e("  s_lshl_b32 s46, s47, 3")
        e("  s_add_u32 s46, s46, 0x20000")
        e("  buffer_store_dword v103, v12, s[20:23], s46 offen")
        e("  v_cmp_eq_u32 vcc, 0, v0")
        e("  s_and_saveexec_b64 s[48:49], vcc")
        e("  buffer_store_dwordx4 v[4:7], off, s[20:23], s47")
        e("  buffer_store_dwordx4 v[8:11], off, s[20:23], s47 offset:16")
    e("L_end:")
    e("  s_endpgm")
    e('.section .rodata,"a"')
    e(".p2align 6")
    e(".amdhsa_kernel %s" % KNAME)
    e("  .amdhsa_next_free_vgpr %d" % nv)
    e("  .amdhsa_next_free_sgpr 72")
    e("  .amdhsa_accum_offset %d" % ((nv + 3) // 4 * 4))
    e("  .amdhsa_group_segment_fixed_size 0")
    e("  .amdhsa_kernarg_size 72")
    e("  .amdhsa_user_sgpr_count 2")
    e("  .amdhsa_user_sgpr_kernarg_segment_ptr 1")
    e("  .amdhsa_system_sgpr_workgroup_id_x 1")
    e(".end_amdhsa_kernel")
    return "\n".join(L) + "\n"
```

```python
import math, struct
from gen1 import KNAME, HEADER, f32hex

def gen(G=256, stamps=False, oflags="sc1", warm=False, lds_pad=90000, tau4=870, c0=1, gsh=6, wmid=20, wmin=16, wmax=32,
        gb=(10, 11), jb=(8, 9), wb=(13, 18), tbit=12, wx=((12, "w", 1), (17, "b", 0)), D1=5, boost=1, Dt=8, kflags="nt", vflags="nt",
        doc="", hdelay=0, L0=None, lk=2, fixed=None):
    W, DP, NP, NST = 4, 8, 5, 16
    L = []
    def e(x, c=None): L.append(x + (("%s; %s" % (" " * max(1, 66 - len(x)), c)) if c else ""))
    def cm(c): L.append("  ; " + c)
    mlbase = NP * 2048
    ldsK = (mlbase + NP * 32 + 256 + 1023) // 1024 * 1024
    lds = max(ldsK + W * 8192, lds_pad)
    vKo = 1; vVoff = 5; vX, vY, vM, vNM = 6, 7, 8, 9; vA = 10
    vWO, vWM, vRO, vRM = 12, 13, 14, 15
    vQ = 16; vO = 32; vLa = 64; vOne = 68; vT = 72; vS = 104; vP = 112; vKr = 116; vSt = 120
    vK = 124; vV = [140, 156]; nv = 172
    vU = vT + 16
    sK, sV, sQ, sO_, sT = 20, 24, 28, 32, 36
    sW, sIt, sC, sSelLo, sSelHi, sTmp = 40, 43, 44, 45, 46, 47
    sOf = [[41, 42], [48, 49]]
    sMask = 52
    sM0 = [66, 67]
    sTm = 68
    sRet, sMode, sRef, sL, sL2, sRaw, sXor = 72, 74, 75, 76, 77, 78, 79
    c = math.log2(math.e) / math.sqrt(128.0)
    rest = [b for b in range(8, 19) if b not in gb and b not in jb and b not in wb and b != tbit]
    assert len(rest) == 4
    tb = 1 << tbit
    smask = sum(1 << b for b in rest)
    contiguous = rest == list(range(rest[0], rest[0] + 4))
    def dep(v, bits): return sum(((v >> i) & 1) << b for i, b in enumerate(bits))
    assert dep(3, jb) < 4096

    def loadK(ds, t, jj):
        if jj: e("  s_add_u32 m0, s%d, %d" % (sM0[t], jj * 1024))
        else: e("  s_mov_b32 m0, s%d" % sM0[t])
        e("  s_nop 0")
        e("  buffer_load_dwordx4 v%d, s[%d:%d], s%d offen %s lds" % (vKo + jj, sK, sK + 3, sOf[ds][t], kflags))
    def loadV(ds, t, jj):
        r = vV[t] + jj * 4
        e("  buffer_load_dwordx4 v[%d:%d], v%d, s[%d:%d], s%d offen offset:%d %s" % (r, r + 3, vVoff, sV, sV + 3, sOf[ds][t], dep(jj, jb), vflags))
    def load(m):
        ds, q, jj = m // 16, (m % 16) // 4, m % 4
        (loadV if q & 1 else loadK)(ds, q // 2, jj)
    def nextraw():
        if contiguous:
            e("  s_add_u32 s%d, s%d, %d" % (sRaw, sRaw, 1 << rest[0]))
        else:
            e("  s_or_b32 s%d, s%d, 0x%x" % (sRaw, sRaw, (~smask) & 0x7ffff & ~((1 << rest[0]) - 1)))
            e("  s_add_u32 s%d, s%d, %d" % (sRaw, sRaw, 1 << rest[0]))
            e("  s_and_b32 s%d, s%d, 0x%x" % (sRaw, sRaw, smask))
        e("  s_xor_b32 s%d, s%d, s%d" % (sOf[1][0], sRaw, sXor), "offset of the next stage's tile 0")
        e("  s_xor_b32 s%d, s%d, %d" % (sOf[1][1], sOf[1][0], tb), "                         tile 1")
    def qloads():
        e("  s_mov_b64 exec, s[%d:%d]" % (sMask, sMask + 1))
        for j in range(4):
            e("  buffer_load_dwordx4 v[%d:%d], v%d, s[%d:%d], 0 offen offset:%d" % (vQ + 4 * j, vQ + 4 * j + 3, vA, sQ, sQ + 3, j * 64))
        e("  s_mov_b64 exec, -1")
    def lds_addrs():
        e("  v_lshl_add_u32 v%d, v%d, 2, v%d" % (vWO, vX, vY))
        e("  v_lshlrev_b32 v%d, 7, v%d" % (vWO, vWO))
        e("  s_lshl_b32 s%d, s%d, 11" % (sTmp, sW))
        e("  v_add_u32 v%d, s%d, v%d" % (vWO, sTmp, vWO), "O partial write: w*2048 + (h*4+g)*128")
        e("  v_lshlrev_b32 v%d, 3, v%d" % (vRM, vX), "(m,l) read: h*8")
        e("  s_lshl_b32 s%d, s%d, 5" % (sTmp, sW))
        e("  v_add_u32 v%d, s%d, v%d" % (vWM, sTmp, vRM), "(m,l) write: w*32 + h*8")
        e("  v_lshlrev_b32 v%d, 7, v%d" % (vRO, vY))
        e("  v_and_b32 v%d, 3, v0" % vM)
        e("  v_lshl_add_u32 v%d, v%d, 5, v%d" % (vRO, vM, vRO))
        e("  v_bfe_u32 v%d, v0, 2, 2" % vM)
        e("  v_lshl_add_u32 v%d, v%d, 2, v%d" % (vRO, vM, vRO))
        e("  s_and_b32 s%d, s%d, 3" % (sTmp, sW))
        e("  s_lshl_b32 s%d, s%d, 9" % (sTmp, sTmp))
        e("  v_add_u32 v%d, s%d, v%d" % (vRO, sTmp, vRO), "O read: head*512 + g*128 + (e&3)*32 + r*4")
    def waits(q):
        if fixed:
            def verf(Ds, last=False):
                for n in range(4 * q, 4 * q + 4):
                    e("  s_waitcnt vmcnt(%d)" % (Ds[n % len(Ds)] - 1))
                    if last: loadK(1, 1, n % 4)
                    else: load(n + DP)
            if q == 3:
                e("  s_cmp_eq_u32 s%d, %d" % (sIt, NST - 2))
                e("  s_cbranch_scc1 L_g3_last")
            if boost:
                e("  s_cmp_ge_u32 s%d, %d" % (sIt, NST - 1 - boost + (1 if q < 2 else 0)))
                e("  s_cbranch_scc1 L_g%d_hi" % q)
            verf(fixed)
            if boost:
                e("  s_branch L_join%d" % q)
                e("L_g%d_hi:" % q)
                verf([Dt])
            if q == 3:
                e("  s_branch L_join3")
                e("L_g3_last:")
                verf([Dt], last=True)
            e("L_join%d:" % q)
            return
        off = (0, 2, 1, 3)[(q + 2) % 4]
        dlo, dhi = wmin // 4, DP
        order = sorted(range(dlo, dhi + 1), key=lambda d: abs(4 * d + 1 - wmid))
        def ver(D, last=False):
            for n in range(4 * q, 4 * q + 4):
                e("  s_waitcnt vmcnt(%d)" % (D - 1))
                if last: loadK(1, 1, n % 4)
                else: load(n + DP)
        if q == 3:
            e("  s_cmp_eq_u32 s%d, %d" % (sIt, NST - 2))
            e("  s_cbranch_scc1 L_g3_last")
        e("  s_add_u32 s%d, s%d, %d" % (sL, sMode, off))
        e("  s_lshr_b32 s%d, s%d, 2" % (sL, sL))
        e("  s_min_u32 s%d, s%d, %d" % (sL, sL, dhi), "window depth of this group")
        for d in order[1:]:
            e("  s_cmp_eq_u32 s%d, %d" % (sL, d))
            e("  s_cbranch_scc1 L_g%d_d%d" % (q, d))
        ver(order[0])
        for d in order[1:]:
            e("  s_branch L_join%d" % q)
            e("L_g%d_d%d:" % (q, d))
            ver(d)
        if q == 3:
            e("  s_branch L_join3")
            e("L_g3_last:")
            ver(Dt, last=True)
        e("L_join%d:" % q)
    def setmode():
        e("  s_waitcnt lgkmcnt(0)")
        e("  s_lshl_b32 s%d, s%d, 2" % (sL, sTm))
        e("  s_cmp_le_u32 s%d, %d" % (sIt, c0))
        e("  s_cselect_b32 s%d, s%d, s%d" % (sRef, sL, sRef), "schedule anchored at this wave's own early progress")
        e("  s_sub_i32 s%d, s%d, s%d" % (sL2, sL, sRef), "lag behind the HBM-rate schedule")
        e("  s_add_u32 s%d, s%d, %d" % (sRef, sRef, tau4))
        if L0 is not None:
            e("  s_sub_i32 s%d, s%d, %d" % (sL, sL2, L0))
            e("  s_max_i32 s%d, s%d, 0" % (sL, sL))
            e("  s_lshr_b32 s%d, s%d, %d" % (sL, sL, lk))
            e("  s_add_u32 s%d, s%d, s%d" % (sRef, sRef, sL), "memory slower than the schedule: let the schedule slip")
        e("  s_add_i32 s%d, s%d, %d" % (sL2, sL2, (1 << (gsh - 1)) + (wmid << gsh)))
        e("  s_ashr_i32 s%d, s%d, %d" % (sL2, sL2, gsh))
        e("  s_min_i32 s%d, s%d, %d" % (sL2, sL2, wmax))
        e("  s_max_i32 s%d, s%d, %d" % (sMode, sL2, wmin), "window in quarter loads")
        if boost:
            e("  s_cmp_ge_u32 s%d, %d" % (sIt, NST - 1 - boost))
            e("  s_cselect_b32 s%d, %d, s%d" % (sMode, 4 * Dt, sMode))
    def qk(t):
        d = vS + 4 * t
        for jj in range(4):
            e("  ds_read_b128 v[%d:%d], v%d offset:%d" % (vK + 4 * jj, vK + 4 * jj + 3, vKr + jj, t * 4096))
        for j in range(4):
            e("  s_waitcnt lgkmcnt(%d)" % (3 - j))
            e("  v_mfma_f32_16x16x32_bf16 v[%d:%d], v[%d:%d], v[%d:%d], %s" %
              (d, d + 3, vK + 4 * j, vK + 4 * j + 3, vQ + 4 * j, vQ + 4 * j + 3, "0" if j == 0 else "v[%d:%d]" % (d, d + 3)))
    def perms(t, ws):
        for w in ws:
            for hh, sel in ((0, sSelLo), (1, sSelHi)):
                for u in range(2):
                    e("  v_perm_b32 v%d, v%d, v%d, s%d" % (vT + (2 * w + hh) * 4 + 2 * t + u, vV[t] + (2 * u + 1) * 4 + w, vV[t] + (2 * u) * 4 + w, sel))
    def pv(jd):
        o = vO + jd * 4
        e("  v_mfma_f32_16x16x32_bf16 v[%d:%d], v[%d:%d], v[%d:%d], v[%d:%d]" % (o, o + 3, vT + 4 * jd, vT + 4 * jd + 3, vP, vP + 3, o, o + 3))
    def pvall(fill):
        perms(1, [0]); perms(1, [1]); pv(0); pv(1); perms(1, [2]); pv(2); pv(3); perms(1, [3]); pv(4); pv(5)
        for x in fill: e(x)
        pv(6); pv(7)
    def lsum():
        e("  v_mfma_f32_16x16x32_bf16 v[%d:%d], v[%d:%d], v[%d:%d], v[%d:%d]" % (vLa, vLa + 3, vOne, vOne + 3, vP, vP + 3, vLa, vLa + 3), "l += sum_k P")
    def xmax(a, t):
        e("  v_mov_b32 v%d, v%d" % (t, a)); e("  s_nop 1")
        e("  v_permlane32_swap_b32 v%d, v%d" % (a, t)); e("  s_nop 1")
        e("  v_max_f32 v%d, v%d, v%d" % (a, a, t))
        e("  v_mov_b32 v%d, v%d" % (t, a)); e("  s_nop 1")
        e("  v_permlane16_swap_b32 v%d, v%d" % (a, t)); e("  s_nop 1")
        e("  v_max_f32 v%d, v%d, v%d" % (a, a, t))
    def scale(r0, n):
        for i in range(n // 2):
            e("  v_pk_mul_f32 v[%d:%d], v[%d:%d], v[%d:%d] op_sel_hi:[1,0]" % (r0 + 2 * i, r0 + 2 * i + 1, r0 + 2 * i, r0 + 2 * i + 1, vA, vA + 1))
    def cvtP():
        for u in range(4):
            e("  v_cvt_pk_bf16_f32 v%d, v%d, v%d" % (vP + u, vS + 2 * u, vS + 2 * u + 1))
    def softmax(tag):
        e("  s_nop 7")
        e("  v_max3_f32 v%d, v%d, v%d, v%d" % (vX, vS, vS + 1, vS + 2))
        e("  v_max3_f32 v%d, v%d, v%d, v%d" % (vY, vS + 3, vS + 4, vS + 5))
        e("  v_max3_f32 v%d, v%d, v%d, v%d" % (vX, vX, vS + 6, vS + 7))
        e("  v_max_f32 v%d, v%d, v%d" % (vX, vX, vY))
        xmax(vX, vY)
        e("  v_mul_f32 v%d, s%d, v%d" % (vX, sC, vX), "stage max, log2 units")
        e("  v_cmp_gt_f32 vcc, v%d, v%d" % (vX, vM))
        e("  s_and_b64 vcc, vcc, s[%d:%d]" % (sMask, sMask + 1))
        e("  s_cbranch_scc0 L_nors%s" % tag, "running max unchanged: factor would be exactly 1")
        e("  v_max_f32 v%d, v%d, v%d" % (vX, vX, vM))
        e("  v_sub_f32 v%d, v%d, v%d" % (vA, vM, vX))
        e("  v_exp_f32 v%d, v%d" % (vA, vA))
        e("  v_mov_b32 v%d, v%d" % (vM, vX))
        e("  v_mul_f32 v%d, v%d, v%d" % (vLa, vLa, vA))
        scale(vO, 32)
        e("L_nors%s:" % tag)
        for i in range(8): e("  v_fma_f32 v%d, v%d, s%d, -v%d" % (vS + i, vS + i, sC, vM))
        for i in range(8): e("  v_exp_f32 v%d, v%d" % (vS + i, vS + i))
        e("  s_nop 0")
        cvtP()

    L.append(HEADER.rstrip("\n"))
    L.append("; @launch grid=(%d,1,1) block=(%d,1,1) lds=%d" % (G, NP * 64, lds))
    if doc: L.append(doc.rstrip("\n"))
    L.append('.amdgcn_target "amdgcn-amd-amdhsa--gfx950"')
    L.append(".text"); L.append(".globl %s" % KNAME); L.append(".p2align 8"); L.append(".type %s,@function" % KNAME); L.append("%s:" % KNAME)
    e("  s_load_dwordx16 s[4:19], s[0:1], 0", "q k v k_tree v_tree mask out debug")
    if stamps: e("  s_memrealtime s[50:51]")
    e("  s_cmp_ge_u32 s2, 256")
    e("  s_cbranch_scc1 L_end", "extra workgroups")
    e("  s_and_b32 s3, s2, 7")
    e("  s_lshr_b32 s2, s2, 3")
    e("  s_lshl_b32 s3, s3, 5")
    e("  s_or_b32 s2, s2, s3", "bh = (id&7)*32 + (id>>3)  (b*8 + kv head)")
    e("  v_lshrrev_b32 v%d, 6, v0" % vX)
    e("  v_and_b32 v0, 63, v0", "lane")
    e("  v_readfirstlane_b32 s%d, v%d" % (sW, vX), "wave")
    e("  v_lshrrev_b32 v%d, 4, v0" % vY, "g = lane>>4")
    e("  v_and_b32 v%d, 15, v0" % vX, "c = lane&15")
    e("  v_lshlrev_b32 v%d, 4, v%d" % (vVoff, vX))
    if gb[1] == gb[0] + 1:
        e("  v_lshl_add_u32 v%d, v%d, %d, v%d" % (vVoff, vY, gb[0], vVoff), "V lane offset = row(g) + c*16")
    else:
        e("  v_and_b32 v%d, 1, v%d" % (vM, vY)); e("  v_lshl_add_u32 v%d, v%d, %d, v%d" % (vVoff, vM, gb[0], vVoff))
        e("  v_lshrrev_b32 v%d, 1, v%d" % (vM, vY)); e("  v_lshl_add_u32 v%d, v%d, %d, v%d" % (vVoff, vM, gb[1], vVoff))
    e("  v_lshlrev_b32 v%d, 6, v%d" % (vM, vY))
    e("  v_xor_b32 v%d, v%d, v%d" % (vKo, vVoff, vM), "K lane offsets: 16-B chunk xor-swizzled by 4g+j")
    for j in range(1, 4): e("  v_xor_b32 v%d, %d, v%d" % (vKo + j, j * 16 + dep(j, jb), vKo))
    e("  s_lshl_b32 s%d, s%d, 13" % (sM0[0], sW))
    e("  s_add_u32 s%d, s%d, %d" % (sM0[0], sM0[0], ldsK))
    e("  s_add_u32 s%d, s%d, 4096" % (sM0[1], sM0[0]), "LDS slots of this wave's two K tiles")
    e("  v_lshlrev_b32 v%d, 8, v%d" % (vNM, vX))
    e("  v_lshl_add_u32 v%d, v%d, 4, v%d" % (vA, vY, vNM), "Q lane offset = head*256 + g*16")
    e("  v_cmp_gt_u32 s[%d:%d], 4, v%d" % (sMask, sMask + 1, vX), "lanes of the 4 real head columns")
    e("  s_lshl_b32 s%d, s2, 19" % sTmp)
    e("  s_and_b32 s%d, s%d, 1" % (sXor, sW))
    e("  s_lshl_b32 s%d, s%d, %d" % (sXor, sXor, wb[0]))
    e("  s_bfe_u32 s%d, s%d, 0x10001" % (sL, sW))
    e("  s_lshl_b32 s%d, s%d, %d" % (sL2, sL, wb[1]))
    e("  s_or_b32 s%d, s%d, s%d" % (sXor, sXor, sL2))
    for b, src, i in wx:
        if (src, i) != ("w", 1):
            e("  s_bfe_u32 s%d, s%d, 0x%x" % (sL2, sW if src == "w" else 2, 0x10000 | i))
            e("  s_lshl_b32 s%d, s%d, %d" % (sL2, sL2, b))
        else:
            e("  s_lshl_b32 s%d, s%d, %d" % (sL2, sL, b))
        e("  s_xor_b32 s%d, s%d, s%d" % (sXor, sXor, sL2))
    e("  s_mov_b32 s%d, s%d" % (sOf[0][0], sXor), "stage 0, tile 0")
    e("  s_xor_b32 s%d, s%d, %d" % (sOf[0][1], sXor, tb), "stage 0, tile 1")
    e("  s_mov_b32 s%d, 0x00020000" % (sK + 3))
    e("  s_mov_b32 s%d, 0x00020000" % (sV + 3))
    e("  s_mov_b32 s%d, 0x80000" % (sK + 2))
    e("  s_mov_b32 s%d, 0x80000" % (sV + 2))
    e("  s_lshl_b32 s%d, s2, 10" % sIt)
    e("  s_mov_b32 s%d, 1024" % (sQ + 2))
    e("  s_mov_b32 s%d, 0x00020000" % (sQ + 3))
    for i in range(0, 16, 2): e("  v_mov_b64 v[%d:%d], 0" % (vQ + i, vQ + i + 1))
    e("  s_cmp_eq_u32 s%d, %d" % (sW, W))
    e("  s_waitcnt lgkmcnt(0)")
    e("  s_cbranch_scc1 L_helper")
    if stamps: e("  s_memrealtime s[60:61]")
    e("  s_add_u32 s%d, s8, s%d" % (sV, sTmp))
    e("  s_addc_u32 s%d, s9, 0" % (sV + 1))
    for jj in range(4): loadV(0, 0, jj)
    e("  s_add_u32 s%d, s6, s%d" % (sK, sTmp))
    e("  s_addc_u32 s%d, s7, 0" % (sK + 1))
    for jj in range(4): loadK(0, 0, jj)
    e("  s_add_u32 s%d, s4, s%d" % (sQ, sIt))
    e("  s_addc_u32 s%d, s5, 0" % (sQ + 1))
    qloads()
    e("  s_add_u32 s%d, s16, s%d" % (sO_, sIt))
    e("  s_addc_u32 s%d, s17, 0" % (sO_ + 1))
    e("  s_mov_b32 s%d, 1024" % (sO_ + 2))
    e("  s_mov_b32 s%d, 0x00020000" % (sO_ + 3))
    e("  s_mov_b32 s%d, 0" % sRaw)
    nextraw()
    e("  s_mov_b32 s%d, %s" % (sC, f32hex(c)), "log2(e)/sqrt(128)")
    e("  s_mov_b32 s%d, 0x05040100" % sSelLo)
    e("  s_mov_b32 s%d, 0x07060302" % sSelHi)
    e("  s_mov_b32 s%d, 0" % sIt)
    e("  s_mov_b32 s%d, 0" % sRet)
    e("  s_mov_b32 s%d, %d" % (sMode, wmid))
    e("  v_xor_b32 v%d, v%d, v%d" % (vKr, vX, vY))
    e("  v_lshlrev_b32 v%d, 4, v%d" % (vKr, vKr))
    e("  v_and_b32 v%d, 3, v0" % vWO)
    e("  v_lshl_add_u32 v%d, v%d, 10, v%d" % (vKr, vWO, vKr))
    e("  v_bfe_u32 v%d, v0, 2, 2" % vWO)
    e("  v_lshl_add_u32 v%d, v%d, 8, v%d" % (vKr, vWO, vKr))
    e("  v_add_u32 v%d, s%d, v%d" % (vKr, sM0[0], vKr), "K fragment read addresses (A operand)")
    for jj in range(1, 4): e("  v_xor_b32 v%d, %d, v%d" % (vKr + jj, jj * 64, vKr))
    lds_addrs()
    e("  v_mov_b32 v%d, %s" % (vM, f32hex(-3.0e38)), "running max")
    for i in range(4): e("  v_mov_b32 v%d, 0x3f803f80" % (vOne + i))
    for i in range(0, 36, 2): e("  v_mov_b64 v[%d:%d], 0" % (vO + i, vO + i + 1))
    if stamps: e("  s_memrealtime s[62:63]")
    cm("first group: V0, K0, Q were issued in that order")
    for n in range(4):
        e("  s_waitcnt vmcnt(%d)" % (D1 - 1 + (4 if n < D1 - 1 else 0)))
        if stamps and n == 0: e("  s_memrealtime s[56:57]")
        load(n + DP)
    e("  s_waitcnt vmcnt(4)")
    if stamps: e("  s_waitcnt lgkmcnt(0)")
    if hdelay == 1: e("  s_barrier", "releases the helper wave")
    e("  s_branch L_mid")

    e("L_loop:")
    waits(0)
    e("L_mid:")
    qk(0)
    if not fixed: e("  s_memrealtime s[%d:%d]" % (sTm, sTm + 1))
    waits(1)
    perms(0, range(4))
    if not fixed: setmode()
    waits(2)
    qk(1)
    softmax("")
    waits(3)
    if stamps: e("  s_memrealtime s[64:65]")
    lsum()
    pvall(["  s_mov_b32 s%d, s%d" % (sOf[0][0], sOf[1][0]), "  s_mov_b32 s%d, s%d" % (sOf[0][1], sOf[1][1])])
    nextraw()
    if stamps:
        e("  s_mov_b32 m0, s%d" % sIt); e("  s_waitcnt lgkmcnt(0)"); e("  v_writelane_b32 v%d, s64, m0" % vSt)
    if hdelay == 2:
        e("  s_cmp_eq_u32 s%d, 2" % sIt)
        e("  s_cbranch_scc0 L_nb")
        e("  s_barrier", "releases the helper wave")
        e("L_nb:")
    e("  s_add_u32 s%d, s%d, 1" % (sIt, sIt))
    e("  s_cmp_lt_u32 s%d, %d" % (sIt, NST - 1))
    e("  s_cbranch_scc1 L_loop")
    cm("last stage: K0, K1 are in flight; V0, V1 follow as they land")
    for jj in range(4):
        e("  s_waitcnt vmcnt(%d)" % (Dt - 1)); loadV(0, 0, jj)
    e("L_tail:")
    qk(0)
    if warm:
        e("  s_cmp_eq_u32 s%d, 1" % sRet)
        e("  s_cbranch_scc1 L_tail2")
    for jj in range(4):
        e("  s_waitcnt vmcnt(%d)" % (Dt - 1)); loadV(0, 1, jj)
    e("L_tail2:")
    qk(1)
    softmax("T")
    if warm:
        e("  s_cmp_eq_u32 s%d, 1" % sRet)
        e("  s_nop 0")
        lsum()
        e("  s_cbranch_scc1 L_w2")
        e("  s_nop 5")
    else:
        e("  s_nop 1")
        lsum()
        e("  s_nop 6")
    e("L_xchg:")
    e("  s_mov_b64 exec, s[%d:%d]" % (sMask, sMask + 1))
    e("  v_mov_b32 v%d, v%d" % (vA, vM))
    e("  v_mov_b32 v%d, v%d" % (vA + 1, vLa))
    e("  ds_write_b64 v%d, v[%d:%d] offset:%d" % (vWM, vA, vA + 1, mlbase))
    e("  s_mov_b64 exec, -1")
    e("  s_waitcnt lgkmcnt(0)")
    e("  s_barrier")
    e("L_w2:")
    rML = vQ
    for w in range(NP):
        e("  ds_read_b64 v[%d:%d], v%d offset:%d" % (rML + 2 * w, rML + 2 * w + 1, vRM, mlbase + w * 32))
    e("  s_lshl_b32 s%d, s%d, 8" % (sTmp, sW))
    e("  s_waitcnt lgkmcnt(0)")
    e("  v_max3_f32 v%d, v%d, v%d, v%d" % (vX, rML, rML + 2, rML + 4))
    e("  v_max3_f32 v%d, v%d, v%d, v%d" % (vX, vX, rML + 6, rML + 8), "global max")
    e("  v_sub_f32 v%d, v%d, v%d" % (vA, vM, vX))
    for w in range(NP): e("  v_sub_f32 v%d, v%d, v%d" % (rML + 2 * w, rML + 2 * w, vX))
    e("  v_exp_f32 v%d, v%d" % (vA, vA))
    for w in range(NP): e("  v_exp_f32 v%d, v%d" % (rML + 2 * w, rML + 2 * w))
    e("  s_nop 0")
    e("  v_mul_f32 v%d, v%d, v%d" % (vY, rML, rML + 1))
    for w in range(1, NP): e("  v_fmac_f32 v%d, v%d, v%d" % (vY, rML + 2 * w, rML + 2 * w + 1))
    e("  v_rcp_f32 v%d, v%d" % (vY, vY), "1 / global sum")
    e("  s_cmp_eq_u32 s%d, 2" % sRet)
    e("  v_mul_f32 v%d, v%d, v%d" % (vA, vA, vY), "this wave's final weight")
    scale(vO, 32)
    e("  s_cbranch_scc1 L_wr")
    scale(vS, 8)
    cvtP()
    e("  s_waitcnt vmcnt(4)")
    perms(0, range(4))
    e("  v_lshlrev_b32 v%d, 2, v0" % vX)
    e("  s_waitcnt vmcnt(0)")
    if stamps: e("  s_memrealtime s[64:65]")
    pvall(["  s_nop 1"])
    if stamps:
        e("  s_memrealtime s[58:59]"); e("  s_waitcnt lgkmcnt(0)"); e("  v_writelane_b32 v%d, s64, 15" % vSt)
    e("L_wr:")
    e("  s_mov_b64 exec, s[%d:%d]" % (sMask, sMask + 1))
    e("  s_cmp_eq_u32 s%d, %d" % (sRet, 1 if warm else 2))
    for jd in range(8):
        if jd == 4: e("  s_nop 1")
        e("  ds_write_b128 v%d, v[%d:%d] offset:%d" % (vWO, vO + 4 * jd, vO + 4 * jd + 3, jd * 16))
    e("  s_mov_b64 exec, -1")
    e("  s_waitcnt lgkmcnt(0)")
    if warm:
        e("  s_cbranch_scc1 L_sum")
        e("  s_cmp_eq_u32 s%d, 2" % sRet)
    e("  s_barrier")
    e("  s_cbranch_scc1 L_end")
    e("L_sum:")
    rO = vQ
    e("  ds_read2_b32 v[%d:%d], v%d offset0:0 offset1:4" % (rO, rO + 1, vRO))
    for w in range(1, NP):
        e("  ds_read_b32 v%d, v%d offset:%d" % (rO + 2 * w, vRO, w * 2048))
        e("  ds_read_b32 v%d, v%d offset:%d" % (rO + 2 * w + 1, vRO, w * 2048 + 16))
    e("  s_waitcnt lgkmcnt(4)")
    e("  v_pk_add_f32 v[%d:%d], v[%d:%d], v[%d:%d]" % (rO, rO + 1, rO, rO + 1, rO + 2, rO + 3))
    e("  v_pk_add_f32 v[%d:%d], v[%d:%d], v[%d:%d]" % (rO, rO + 1, rO, rO + 1, rO + 4, rO + 5))
    e("  s_waitcnt lgkmcnt(0)")
    e("  v_pk_add_f32 v[%d:%d], v[%d:%d], v[%d:%d]" % (rO + 6, rO + 7, rO + 6, rO + 7, rO + 8, rO + 9))
    e("  v_pk_add_f32 v[%d:%d], v[%d:%d], v[%d:%d]" % (rO, rO + 1, rO, rO + 1, rO + 6, rO + 7))
    e("  v_cvt_pk_bf16_f32 v%d, v%d, v%d" % (rO, rO, rO + 1))
    e("  buffer_store_dword v%d, v%d, s[%d:%d], s%d offen %s" % (rO, vX, sO_, sO_ + 3, sTmp, oflags))
    if warm: e("  s_cbranch_scc1 L_help2")
    if stamps:
        e("  s_waitcnt vmcnt(0)"); e("  s_memrealtime s[52:53]"); e("  s_load_dwordx2 s[20:21], s[0:1], 64"); e("  s_mov_b32 s22, 0x100000")
        e("  s_getreg_b32 s54, hwreg(HW_REG_XCC_ID)"); e("  s_getreg_b32 s55, hwreg(HW_REG_HW_ID)"); e("  s_waitcnt lgkmcnt(0)")
        for i, sr in enumerate([50, 56, 58, 52, 54, 55, 60, 62]): e("  v_mov_b32 v%d, s%d" % (16 + i, sr))
        e("  s_mul_i32 s47, s2, %d" % W); e("  s_add_u32 s47, s47, s40"); e("  s_lshl_b32 s47, s47, 5")
        e("  v_lshlrev_b32 v12, 2, v0"); e("  s_lshl_b32 s46, s47, 3"); e("  s_add_u32 s46, s46, 0x20000")
        e("  buffer_store_dword v%d, v12, s[20:23], s46 offen" % vSt)
        e("  v_cmp_eq_u32 vcc, 0, v0"); e("  s_and_saveexec_b64 s[48:49], vcc")
        e("  buffer_store_dwordx4 v[16:19], off, s[20:23], s47"); e("  buffer_store_dwordx4 v[20:23], off, s[20:23], s47 offset:16")
    e("L_end:")
    e("  s_endpgm")
    cm("helper wave: tree token partial (m = score + mask bias, l = 1, O = v_tree)")
    e("L_helper:")
    if hdelay: e("  s_barrier", "keep out of the way while the streaming waves start up")
    e("  s_add_u32 s%d, s4, s%d" % (sQ, sIt))
    e("  s_addc_u32 s%d, s5, 0" % (sQ + 1))
    if warm:
        e("  s_mov_b32 s%d, s16" % sO_)
        e("  s_mov_b32 s%d, s17" % (sO_ + 1))
        e("  s_mov_b32 s%d, 0" % (sO_ + 2), "zero records: the dry pass below stores nothing")
        e("  s_mov_b32 s%d, 0x00020000" % (sO_ + 3))
    e("  v_mov_b32 v%d, v%d" % (vKo, vA))
    e("  v_lshlrev_b32 v%d, 6, v%d" % (vKo + 1, vY))
    lds_addrs()
    e("  s_mov_b32 s%d, %s" % (sC, f32hex(c)))
    if warm:
        for jj in range(4): e("  v_mov_b32 v%d, v%d" % (vKr + jj, vVoff))
        e("  s_mov_b32 s%d, 0x05040100" % sSelLo)
        e("  s_mov_b32 s%d, 0x07060302" % sSelHi)
        e("  s_mov_b32 s%d, 1" % sRet)
        e("  s_branch L_tail", "dry pass through the tail code (instruction cache), no global access")
    e("L_help2:")
    e("  s_mov_b32 s%d, 2" % sRet)
    if warm:
        e("  v_mov_b32 v%d, v%d" % (vA, vKo))
        for i in range(0, 16, 2): e("  v_mov_b64 v[%d:%d], 0" % (vQ + i, vQ + i + 1))
    qloads()
    e("  s_lshl_b32 s%d, s2, 8" % sTmp)
    e("  s_add_u32 s%d, s10, s%d" % (sT, sTmp))
    e("  s_addc_u32 s%d, s11, 0" % (sT + 1))
    e("  s_mov_b32 s%d, 256" % (sT + 2))
    e("  s_mov_b32 s%d, 0x00020000" % (sT + 3))
    for j in range(4):
        e("  buffer_load_dwordx4 v[%d:%d], v%d, s[%d:%d], 0 offen offset:%d" % (vT + 4 * j, vT + 4 * j + 3, vA, sT, sT + 3, j * 64))
    e("  s_add_u32 s%d, s12, s%d" % (sT, sTmp))
    e("  s_addc_u32 s%d, s13, 0" % (sT + 1))
    for r in range(4):
        e("  buffer_load_dwordx4 v[%d:%d], v%d, s[%d:%d], 0 offen offset:%d" % (vU + 4 * r, vU + 4 * r + 3, vKo + 1, sT, sT + 3, r * 16))
    e("  s_mov_b32 s%d, s14" % sT)
    e("  s_mov_b32 s%d, s15" % (sT + 1))
    e("  s_mov_b32 s%d, 64" % (sT + 2))
    e("  s_lshr_b32 s%d, s2, 3" % sTmp)
    e("  s_lshl_b32 s%d, s%d, 1" % (sTmp, sTmp))
    e("  buffer_load_ushort v%d, off, s[%d:%d], s%d" % (vNM, sT, sT + 3, sTmp), "tree_mask[b]")
    e("  v_mov_b32 v%d, %s" % (vM, f32hex(-3.0e38)))
    e("  s_waitcnt vmcnt(0)")
    for j in range(4):
        e("  v_mfma_f32_16x16x32_bf16 v[%d:%d], v[%d:%d], v[%d:%d], %s" %
          (vS, vS + 3, vT + 4 * j, vT + 4 * j + 3, vQ + 4 * j, vQ + 4 * j + 3, "0" if j == 0 else "v[%d:%d]" % (vS, vS + 3)))
    for r in range(4):
        for w in range(4):
            e("  v_lshlrev_b32 v%d, 16, v%d" % (vO + (2 * w) * 4 + r, vU + 4 * r + w))
            e("  v_and_b32 v%d, 0xffff0000, v%d" % (vO + (2 * w + 1) * 4 + r, vU + 4 * r + w))
    e("  v_lshlrev_b32 v%d, 16, v%d" % (vNM, vNM))
    e("  v_sub_f32 v%d, 1.0, v%d" % (vNM, vNM))
    e("  v_mul_f32 v%d, %s, v%d" % (vNM, f32hex(-1.0e9 * math.log2(math.e)), vNM), "(1-mask) * -1e9, log2 units")
    e("  v_fma_f32 v%d, v%d, s%d, v%d" % (vX, vS, sC, vNM))
    e("  v_cmp_gt_u32 vcc, 16, v0")
    e("  v_mov_b32 v%d, 1.0" % vLa)
    e("  s_nop 0")
    e("  v_cndmask_b32 v%d, v%d, v%d, vcc" % (vM, vM, vX))
    xmax(vM, vX)
    e("  s_branch L_xchg")
    L.append('.section .rodata,"a"'); L.append(".p2align 6"); L.append(".amdhsa_kernel %s" % KNAME)
    L.append("  .amdhsa_next_free_vgpr %d" % nv); L.append("  .amdhsa_next_free_sgpr 80"); L.append("  .amdhsa_accum_offset %d" % ((nv + 3) // 4 * 4))
    L.append("  .amdhsa_group_segment_fixed_size 0"); L.append("  .amdhsa_kernarg_size 72"); L.append("  .amdhsa_user_sgpr_count 2")
    L.append("  .amdhsa_user_sgpr_kernarg_segment_ptr 1"); L.append("  .amdhsa_system_sgpr_workgroup_id_x 1"); L.append(".end_amdhsa_kernel")
    return "\n".join(L) + "\n"
```

```python
import sys
sys.path.insert(0,'bench')
from gen11 import gen
from build import build
DOC = """; ---------------------------------------------------------------------------------------------
; ---------------------------------------------------------------------------------------------"""
asm = gen(boost=0, tau4=870, peel2=True, D1=7, ga=(3,60,300), g2=(5,7,12,80), fast=2, doc=DOC)
build("final", asm)
open("standalone__tree_speculative_verify_tree_attention_over_candidate_token_tree__sampling.s","w").write(asm)
```

```python
import math, struct
from gen1 import KNAME, HEADER, f32hex

def gen(G=256, stamps=False, oflags="sc1", warm=False, lds_pad=90000, tau4=870, c0=1, gsh=6, wmid=20, wmin=16, wmax=32,
        gb=(10, 11), jb=(8, 9), wb=(13, 18), tbit=12, wx=((12, "w", 1), (17, "b", 0)), D1=5, boost=1, Dt=8, kflags="nt", vflags="nt",
        doc="", hdelay=0, L0=None, lk=2, fixed=None, peel2=False, x4=0, w0=None):
    W, DP, NP, NST = 4, 8, 5, 16
    L = []
    def e(x, c=None): L.append(x + (("%s; %s" % (" " * max(1, 66 - len(x)), c)) if c else ""))
    def cm(c): L.append("  ; " + c)
    mlbase = NP * 2048
    ldsK = (mlbase + NP * 32 + 256 + 1023) // 1024 * 1024
    lds = max(ldsK + W * 8192, lds_pad)
    vKo = 1; vVoff = 5; vX, vY, vM, vNM = 6, 7, 8, 9; vA = 10
    vWO, vWM, vRO, vRM = 12, 13, 14, 15
    vQ = 16; vO = 32; vLa = 64; vOne = 68; vT = 72; vS = 104; vP = 112; vKr = 116; vSt = 120
    vK = 124; vV = [140, 156]; nv = 172
    vU = vT + 16
    sK, sV, sQ, sO_, sT = 20, 24, 28, 32, 36
    sW, sIt, sC, sSelLo, sSelHi, sTmp = 40, 43, 44, 45, 46, 47
    sOf = [[41, 42], [48, 49]]
    sMask = 52
    sM0 = [66, 67]
    sTm = 68
    sRet, sMode, sRef, sL, sL2, sRaw, sXor = 72, 74, 75, 76, 77, 78, 79
    c = math.log2(math.e) / math.sqrt(128.0)
    rest = [b for b in range(8, 19) if b not in gb and b not in jb and b not in wb and b != tbit]
    assert len(rest) == 4
    tb = 1 << tbit
    smask = sum(1 << b for b in rest)
    contiguous = rest == list(range(rest[0], rest[0] + 4))
    def dep(v, bits): return sum(((v >> i) & 1) << b for i, b in enumerate(bits))
    assert dep(3, jb) < 4096

    def loadK(ds, t, jj):
        if jj: e("  s_add_u32 m0, s%d, %d" % (sM0[t], jj * 1024))
        else: e("  s_mov_b32 m0, s%d" % sM0[t])
        e("  s_nop 0")
        e("  buffer_load_dwordx4 v%d, s[%d:%d], s%d offen %s lds" % (vKo + jj, sK, sK + 3, sOf[ds][t], kflags))
    def loadV(ds, t, jj):
        r = vV[t] + jj * 4
        e("  buffer_load_dwordx4 v[%d:%d], v%d, s[%d:%d], s%d offen offset:%d %s" % (r, r + 3, vVoff, sV, sV + 3, sOf[ds][t], dep(jj, jb), vflags))
    def load(m):
        ds, q, jj = m // 16, (m % 16) // 4, m % 4
        (loadV if q & 1 else loadK)(ds, q // 2, jj)
    def nextraw():
        if contiguous:
            e("  s_add_u32 s%d, s%d, %d" % (sRaw, sRaw, 1 << rest[0]))
        else:
            e("  s_or_b32 s%d, s%d, 0x%x" % (sRaw, sRaw, (~smask) & 0x7ffff & ~((1 << rest[0]) - 1)))
            e("  s_add_u32 s%d, s%d, %d" % (sRaw, sRaw, 1 << rest[0]))
            e("  s_and_b32 s%d, s%d, 0x%x" % (sRaw, sRaw, smask))
        e("  s_xor_b32 s%d, s%d, s%d" % (sOf[1][0], sRaw, sXor), "offset of the next stage's tile 0")
        e("  s_xor_b32 s%d, s%d, %d" % (sOf[1][1], sOf[1][0], tb), "                         tile 1")
    def qloads():
        e("  s_mov_b64 exec, s[%d:%d]" % (sMask, sMask + 1))
        for j in range(4):
            e("  buffer_load_dwordx4 v[%d:%d], v%d, s[%d:%d], 0 offen offset:%d" % (vQ + 4 * j, vQ + 4 * j + 3, vA, sQ, sQ + 3, j * 64))
        e("  s_mov_b64 exec, -1")
    def lds_addrs():
        e("  v_lshl_add_u32 v%d, v%d, 2, v%d" % (vWO, vX, vY))
        e("  v_lshlrev_b32 v%d, 7, v%d" % (vWO, vWO))
        e("  s_lshl_b32 s%d, s%d, 11" % (sTmp, sW))
        e("  v_add_u32 v%d, s%d, v%d" % (vWO, sTmp, vWO), "O partial write: w*2048 + (h*4+g)*128")
        e("  v_lshlrev_b32 v%d, 3, v%d" % (vRM, vX), "(m,l) read: h*8")
        e("  s_lshl_b32 s%d, s%d, 5" % (sTmp, sW))
        e("  v_add_u32 v%d, s%d, v%d" % (vWM, sTmp, vRM), "(m,l) write: w*32 + h*8")
        e("  v_lshlrev_b32 v%d, 7, v%d" % (vRO, vY))
        e("  v_and_b32 v%d, 3, v0" % vM)
        e("  v_lshl_add_u32 v%d, v%d, 5, v%d" % (vRO, vM, vRO))
        e("  v_bfe_u32 v%d, v0, 2, 2" % vM)
        e("  v_lshl_add_u32 v%d, v%d, 2, v%d" % (vRO, vM, vRO))
        e("  s_and_b32 s%d, s%d, 3" % (sTmp, sW))
        e("  s_lshl_b32 s%d, s%d, 9" % (sTmp, sTmp))
        e("  v_add_u32 v%d, s%d, v%d" % (vRO, sTmp, vRO), "O read: head*512 + g*128 + (e&3)*32 + r*4")
    def waits(q):
        if fixed:
            def verf(Ds, last=False):
                for n in range(4 * q, 4 * q + 4):
                    e("  s_waitcnt vmcnt(%d)" % (Ds[n % len(Ds)] - 1))
                    if last: loadK(1, 1, n % 4)
                    else: load(n + DP)
            if q == 3:
                e("  s_cmp_eq_u32 s%d, %d" % (sIt, NST - 2))
                e("  s_cbranch_scc1 L_g3_last")
            if boost:
                e("  s_cmp_ge_u32 s%d, %d" % (sIt, NST - 1 - boost + (1 if q < 2 else 0)))
                e("  s_cbranch_scc1 L_g%d_hi" % q)
            verf(fixed)
            if boost:
                e("  s_branch L_join%d" % q)
                e("L_g%d_hi:" % q)
                verf([Dt])
            if q == 3:
                e("  s_branch L_join3")
                e("L_g3_last:")
                verf([Dt], last=True)
            e("L_join%d:" % q)
            return
        off = (0, 2, 1, 3)[(q + 2) % 4]
        dlo, dhi = wmin // 4, DP
        order = sorted(range(dlo, dhi + 1), key=lambda d: abs(4 * d + 1 - wmid))
        def ver(D, last=False):
            for n in range(4 * q, 4 * q + 4):
                e("  s_waitcnt vmcnt(%d)" % (D - 1))
                if last: loadK(1, 1, n % 4)
                else: load(n + DP)
        if q == 3:
            e("  s_cmp_eq_u32 s%d, %d" % (sIt, NST - 2))
            e("  s_cbranch_scc1 L_g3_last")
        e("  s_add_u32 s%d, s%d, %d" % (sL, sMode, off))
        e("  s_lshr_b32 s%d, s%d, 2" % (sL, sL))
        e("  s_min_u32 s%d, s%d, %d" % (sL, sL, dhi), "window depth of this group")
        for d in order[1:]:
            e("  s_cmp_eq_u32 s%d, %d" % (sL, d))
            e("  s_cbranch_scc1 L_g%d_d%d" % (q, d))
        ver(order[0])
        for d in order[1:]:
            e("  s_branch L_join%d" % q)
            e("L_g%d_d%d:" % (q, d))
            ver(d)
        if q == 3:
            e("  s_branch L_join3")
            e("L_g3_last:")
            ver(Dt, last=True)
        e("L_join%d:" % q)
    def setmode():
        e("  s_waitcnt lgkmcnt(0)")
        e("  s_lshl_b32 s%d, s%d, 2" % (sL, sTm))
        e("  s_cmp_le_u32 s%d, %d" % (sIt, c0))
        if x4:
            e("  s_sub_u32 s%d, s%d, s73" % (sL2, sL))
            e("  s_cselect_b32 s%d, s%d, s%d" % (sL2, sL2, sL2))
            e("  s_cmp_le_u32 s%d, %d" % (sIt, c0))
            e("  s_cselect_b32 s%d, s%d, s%d" % (sRef, sL2, sRef))
        else:
            e("  s_cselect_b32 s%d, s%d, s%d" % (sRef, sL, sRef), "schedule anchored at this wave's own early progress")
        e("  s_sub_i32 s%d, s%d, s%d" % (sL2, sL, sRef), "lag behind the HBM-rate schedule")
        e("  s_add_u32 s%d, s%d, %d" % (sRef, sRef, tau4))
        if L0 is not None:
            e("  s_sub_i32 s%d, s%d, %d" % (sL, sL2, L0))
            e("  s_max_i32 s%d, s%d, 0" % (sL, sL))
            e("  s_lshr_b32 s%d, s%d, %d" % (sL, sL, lk))
            e("  s_add_u32 s%d, s%d, s%d" % (sRef, sRef, sL), "memory slower than the schedule: let the schedule slip")
        e("  s_add_i32 s%d, s%d, %d" % (sL2, sL2, (1 << (gsh - 1)) + (wmid << gsh)))
        e("  s_ashr_i32 s%d, s%d, %d" % (sL2, sL2, gsh))
        e("  s_min_i32 s%d, s%d, %d" % (sL2, sL2, wmax))
        e("  s_max_i32 s%d, s%d, %d" % (sMode, sL2, wmin), "window in quarter loads")
        if boost:
            e("  s_cmp_ge_u32 s%d, %d" % (sIt, NST - 1 - boost))
            e("  s_cselect_b32 s%d, %d, s%d" % (sMode, 4 * Dt, sMode))
    def qk(t):
        d = vS + 4 * t
        for jj in range(4):
            e("  ds_read_b128 v[%d:%d], v%d offset:%d" % (vK + 4 * jj, vK + 4 * jj + 3, vKr + jj, t * 4096))
        for j in range(4):
            e("  s_waitcnt lgkmcnt(%d)" % (3 - j))
            e("  v_mfma_f32_16x16x32_bf16 v[%d:%d], v[%d:%d], v[%d:%d], %s" %
              (d, d + 3, vK + 4 * j, vK + 4 * j + 3, vQ + 4 * j, vQ + 4 * j + 3, "0" if j == 0 else "v[%d:%d]" % (d, d + 3)))
    def perms(t, ws):
        for w in ws:
            for hh, sel in ((0, sSelLo), (1, sSelHi)):
                for u in range(2):
                    e("  v_perm_b32 v%d, v%d, v%d, s%d" % (vT + (2 * w + hh) * 4 + 2 * t + u, vV[t] + (2 * u + 1) * 4 + w, vV[t] + (2 * u) * 4 + w, sel))
    def pv(jd):
        o = vO + jd * 4
        e("  v_mfma_f32_16x16x32_bf16 v[%d:%d], v[%d:%d], v[%d:%d], v[%d:%d]" % (o, o + 3, vT + 4 * jd, vT + 4 * jd + 3, vP, vP + 3, o, o + 3))
    def pvall(fill):
        perms(1, [0]); perms(1, [1]); pv(0); pv(1); perms(1, [2]); pv(2); pv(3); perms(1, [3]); pv(4); pv(5)
        for x in fill: e(x)
        pv(6); pv(7)
    def lsum():
        e("  v_mfma_f32_16x16x32_bf16 v[%d:%d], v[%d:%d], v[%d:%d], v[%d:%d]" % (vLa, vLa + 3, vOne, vOne + 3, vP, vP + 3, vLa, vLa + 3), "l += sum_k P")
    def xmax(a, t):
        e("  v_mov_b32 v%d, v%d" % (t, a)); e("  s_nop 1")
        e("  v_permlane32_swap_b32 v%d, v%d" % (a, t)); e("  s_nop 1")
        e("  v_max_f32 v%d, v%d, v%d" % (a, a, t))
        e("  v_mov_b32 v%d, v%d" % (t, a)); e("  s_nop 1")
        e("  v_permlane16_swap_b32 v%d, v%d" % (a, t)); e("  s_nop 1")
        e("  v_max_f32 v%d, v%d, v%d" % (a, a, t))
    def scale(r0, n):
        for i in range(n // 2):
            e("  v_pk_mul_f32 v[%d:%d], v[%d:%d], v[%d:%d] op_sel_hi:[1,0]" % (r0 + 2 * i, r0 + 2 * i + 1, r0 + 2 * i, r0 + 2 * i + 1, vA, vA + 1))
    def cvtP():
        for u in range(4):
            e("  v_cvt_pk_bf16_f32 v%d, v%d, v%d" % (vP + u, vS + 2 * u, vS + 2 * u + 1))
    def softmax(tag):
        e("  s_nop 7")
        e("  v_max3_f32 v%d, v%d, v%d, v%d" % (vX, vS, vS + 1, vS + 2))
        e("  v_max3_f32 v%d, v%d, v%d, v%d" % (vY, vS + 3, vS + 4, vS + 5))
        e("  v_max3_f32 v%d, v%d, v%d, v%d" % (vX, vX, vS + 6, vS + 7))
        e("  v_max_f32 v%d, v%d, v%d" % (vX, vX, vY))
        xmax(vX, vY)
        e("  v_mul_f32 v%d, s%d, v%d" % (vX, sC, vX), "stage max, log2 units")
        e("  v_cmp_gt_f32 vcc, v%d, v%d" % (vX, vM))
        e("  s_and_b64 vcc, vcc, s[%d:%d]" % (sMask, sMask + 1))
        e("  s_cbranch_scc0 L_nors%s" % tag, "running max unchanged: factor would be exactly 1")
        e("  v_max_f32 v%d, v%d, v%d" % (vX, vX, vM))
        e("  v_sub_f32 v%d, v%d, v%d" % (vA, vM, vX))
        e("  v_exp_f32 v%d, v%d" % (vA, vA))
        e("  v_mov_b32 v%d, v%d" % (vM, vX))
        e("  v_mul_f32 v%d, v%d, v%d" % (vLa, vLa, vA))
        scale(vO, 32)
        e("L_nors%s:" % tag)
        for i in range(8): e("  v_fma_f32 v%d, v%d, s%d, -v%d" % (vS + i, vS + i, sC, vM))
        for i in range(8): e("  v_exp_f32 v%d, v%d" % (vS + i, vS + i))
        e("  s_nop 0")
        cvtP()

    L.append(HEADER.rstrip("\n"))
    L.append("; @launch grid=(%d,1,1) block=(%d,1,1) lds=%d" % (G, NP * 64, lds))
    if doc: L.append(doc.rstrip("\n"))
    L.append('.amdgcn_target "amdgcn-amd-amdhsa--gfx950"')
    L.append(".text"); L.append(".globl %s" % KNAME); L.append(".p2align 8"); L.append(".type %s,@function" % KNAME); L.append("%s:" % KNAME)
    e("  s_load_dwordx16 s[4:19], s[0:1], 0", "q k v k_tree v_tree mask out debug")
    if stamps: e("  s_memrealtime s[50:51]")
    e("  s_cmp_ge_u32 s2, 256")
    e("  s_cbranch_scc1 L_end", "extra workgroups")
    e("  s_and_b32 s3, s2, 7")
    e("  s_lshr_b32 s2, s2, 3")
    e("  s_lshl_b32 s3, s3, 5")
    e("  s_or_b32 s2, s2, s3", "bh = (id&7)*32 + (id>>3)  (b*8 + kv head)")
    e("  v_lshrrev_b32 v%d, 6, v0" % vX)
    e("  v_and_b32 v0, 63, v0", "lane")
    e("  v_readfirstlane_b32 s%d, v%d" % (sW, vX), "wave")
    e("  v_lshrrev_b32 v%d, 4, v0" % vY, "g = lane>>4")
    e("  v_and_b32 v%d, 15, v0" % vX, "c = lane&15")
    e("  v_lshlrev_b32 v%d, 4, v%d" % (vVoff, vX))
    if gb[1] == gb[0] + 1:
        e("  v_lshl_add_u32 v%d, v%d, %d, v%d" % (vVoff, vY, gb[0], vVoff), "V lane offset = row(g) + c*16")
    else:
        e("  v_and_b32 v%d, 1, v%d" % (vM, vY)); e("  v_lshl_add_u32 v%d, v%d, %d, v%d" % (vVoff, vM, gb[0], vVoff))
        e("  v_lshrrev_b32 v%d, 1, v%d" % (vM, vY)); e("  v_lshl_add_u32 v%d, v%d, %d, v%d" % (vVoff, vM, gb[1], vVoff))
    e("  v_lshlrev_b32 v%d, 6, v%d" % (vM, vY))
    e("  v_xor_b32 v%d, v%d, v%d" % (vKo, vVoff, vM), "K lane offsets: 16-B chunk xor-swizzled by 4g+j")
    for j in range(1, 4): e("  v_xor_b32 v%d, %d, v%d" % (vKo + j, j * 16 + dep(j, jb), vKo))
    e("  s_lshl_b32 s%d, s%d, 13" % (sM0[0], sW))
    e("  s_add_u32 s%d, s%d, %d" % (sM0[0], sM0[0], ldsK))
    e("  s_add_u32 s%d, s%d, 4096" % (sM0[1], sM0[0]), "LDS slots of this wave's two K tiles")
    e("  v_lshlrev_b32 v%d, 8, v%d" % (vNM, vX))
    e("  v_lshl_add_u32 v%d, v%d, 4, v%d" % (vA, vY, vNM), "Q lane offset = head*256 + g*16")
    e("  v_cmp_gt_u32 s[%d:%d], 4, v%d" % (sMask, sMask + 1, vX), "lanes of the 4 real head columns")
    e("  s_lshl_b32 s%d, s2, 19" % sTmp)
    e("  s_and_b32 s%d, s%d, 1" % (sXor, sW))
    e("  s_lshl_b32 s%d, s%d, %d" % (sXor, sXor, wb[0]))
    e("  s_bfe_u32 s%d, s%d, 0x10001" % (sL, sW))
    e("  s_lshl_b32 s%d, s%d, %d" % (sL2, sL, wb[1]))
    e("  s_or_b32 s%d, s%d, s%d" % (sXor, sXor, sL2))
    for b, src, i in wx:
        if (src, i) != ("w", 1):
            e("  s_bfe_u32 s%d, s%d, 0x%x" % (sL2, sW if src == "w" else 2, 0x10000 | i))
            e("  s_lshl_b32 s%d, s%d, %d" % (sL2, sL2, b))
        else:
            e("  s_lshl_b32 s%d, s%d, %d" % (sL2, sL, b))
        e("  s_xor_b32 s%d, s%d, s%d" % (sXor, sXor, sL2))
    e("  s_mov_b32 s%d, s%d" % (sOf[0][0], sXor), "stage 0, tile 0")
    e("  s_xor_b32 s%d, s%d, %d" % (sOf[0][1], sXor, tb), "stage 0, tile 1")
    e("  s_mov_b32 s%d, 0x00020000" % (sK + 3))
    e("  s_mov_b32 s%d, 0x00020000" % (sV + 3))
    e("  s_mov_b32 s%d, 0x80000" % (sK + 2))
    e("  s_mov_b32 s%d, 0x80000" % (sV + 2))
    e("  s_lshl_b32 s%d, s2, 10" % sIt)
    e("  s_mov_b32 s%d, 1024" % (sQ + 2))
    e("  s_mov_b32 s%d, 0x00020000" % (sQ + 3))
    for i in range(0, 16, 2): e("  v_mov_b64 v[%d:%d], 0" % (vQ + i, vQ + i + 1))
    e("  s_cmp_eq_u32 s%d, %d" % (sW, W))
    e("  s_waitcnt lgkmcnt(0)")
    e("  s_cbranch_scc1 L_helper")
    if stamps: e("  s_memrealtime s[60:61]")
    e("  s_add_u32 s%d, s8, s%d" % (sV, sTmp))
    e("  s_addc_u32 s%d, s9, 0" % (sV + 1))
    for jj in range(4): loadV(0, 0, jj)
    e("  s_add_u32 s%d, s6, s%d" % (sK, sTmp))
    e("  s_addc_u32 s%d, s7, 0" % (sK + 1))
    for jj in range(4): loadK(0, 0, jj)
    e("  s_add_u32 s%d, s4, s%d" % (sQ, sIt))
    e("  s_addc_u32 s%d, s5, 0" % (sQ + 1))
    qloads()
    e("  s_add_u32 s%d, s16, s%d" % (sO_, sIt))
    e("  s_addc_u32 s%d, s17, 0" % (sO_ + 1))
    e("  s_mov_b32 s%d, 1024" % (sO_ + 2))
    e("  s_mov_b32 s%d, 0x00020000" % (sO_ + 3))
    e("  s_mov_b32 s%d, 0" % sRaw)
    nextraw()
    e("  s_mov_b32 s%d, %s" % (sC, f32hex(c)), "log2(e)/sqrt(128)")
    e("  s_mov_b32 s%d, 0x05040100" % sSelLo)
    e("  s_mov_b32 s%d, 0x07060302" % sSelHi)
    e("  s_mov_b32 s%d, 0" % sIt)
    e("  s_mov_b32 s%d, 0" % sRet)
    e("  s_mov_b32 s%d, %d" % (sMode, w0 if w0 else wmid))
    if x4:
        e("  s_cmp_eq_u32 s3, 128")
        e("  s_cselect_b32 s73, %d, 0" % x4)
    e("  v_xor_b32 v%d, v%d, v%d" % (vKr, vX, vY))
    e("  v_lshlrev_b32 v%d, 4, v%d" % (vKr, vKr))
    e("  v_and_b32 v%d, 3, v0" % vWO)
    e("  v_lshl_add_u32 v%d, v%d, 10, v%d" % (vKr, vWO, vKr))
    e("  v_bfe_u32 v%d, v0, 2, 2" % vWO)
    e("  v_lshl_add_u32 v%d, v%d, 8, v%d" % (vKr, vWO, vKr))
    e("  v_add_u32 v%d, s%d, v%d" % (vKr, sM0[0], vKr), "K fragment read addresses (A operand)")
    for jj in range(1, 4): e("  v_xor_b32 v%d, %d, v%d" % (vKr + jj, jj * 64, vKr))
    lds_addrs()
    e("  v_mov_b32 v%d, %s" % (vM, f32hex(-3.0e38)), "running max")
    for i in range(4): e("  v_mov_b32 v%d, 0x3f803f80" % (vOne + i))
    for i in range(0, 36, 2): e("  v_mov_b64 v[%d:%d], 0" % (vO + i, vO + i + 1))
    if stamps: e("  s_memrealtime s[62:63]")
    cm("first group: V0, K0, Q were issued in that order")
    for n in range(8 if peel2 else 4):
        e("  s_waitcnt vmcnt(%d)" % (D1 - 1 + (4 if n < D1 - 1 else 0)))
        if stamps and n == 0: e("  s_memrealtime s[56:57]")
        load(n + DP)
    e("  s_waitcnt vmcnt(%d)" % (8 if peel2 else 4))
    if stamps: e("  s_waitcnt lgkmcnt(0)")
    if hdelay == 1: e("  s_barrier", "releases the helper wave")
    e("  s_branch L_mid")

    e("L_loop:")
    waits(0)
    e("L_mid:")
    qk(0)
    if not fixed: e("  s_memrealtime s[%d:%d]" % (sTm, sTm + 1))
    if peel2:
        e("  s_cmp_eq_u32 s%d, 0" % sIt)
        e("  s_cbranch_scc1 L_join1", "stage 0: these loads were issued in the prologue")
    waits(1)
    perms(0, range(4))
    if not fixed: setmode()
    waits(2)
    qk(1)
    softmax("")
    waits(3)
    if stamps: e("  s_memrealtime s[64:65]")
    lsum()
    pvall(["  s_mov_b32 s%d, s%d" % (sOf[0][0], sOf[1][0]), "  s_mov_b32 s%d, s%d" % (sOf[0][1], sOf[1][1])])
    nextraw()
    if stamps:
        e("  s_mov_b32 m0, s%d" % sIt); e("  s_waitcnt lgkmcnt(0)"); e("  v_writelane_b32 v%d, s64, m0" % vSt)
    if hdelay == 2:
        e("  s_cmp_eq_u32 s%d, 2" % sIt)
        e("  s_cbranch_scc0 L_nb")
        e("  s_barrier", "releases the helper wave")
        e("L_nb:")
    e("  s_add_u32 s%d, s%d, 1" % (sIt, sIt))
    e("  s_cmp_lt_u32 s%d, %d" % (sIt, NST - 1))
    e("  s_cbranch_scc1 L_loop")
    cm("last stage: K0, K1 are in flight; V0, V1 follow as they land")
    for jj in range(4):
        e("  s_waitcnt vmcnt(%d)" % (Dt - 1)); loadV(0, 0, jj)
    e("L_tail:")
    qk(0)
    if warm:
        e("  s_cmp_eq_u32 s%d, 1" % sRet)
        e("  s_cbranch_scc1 L_tail2")
    for jj in range(4):
        e("  s_waitcnt vmcnt(%d)" % (Dt - 1)); loadV(0, 1, jj)
    e("L_tail2:")
    qk(1)
    softmax("T")
    if warm:
        e("  s_cmp_eq_u32 s%d, 1" % sRet)
        e("  s_nop 0")
        lsum()
        e("  s_cbranch_scc1 L_w2")
        e("  s_nop 5")
    else:
        e("  s_nop 1")
        lsum()
        e("  s_nop 6")
    e("L_xchg:")
    e("  s_mov_b64 exec, s[%d:%d]" % (sMask, sMask + 1))
    e("  v_mov_b32 v%d, v%d" % (vA, vM))
    e("  v_mov_b32 v%d, v%d" % (vA + 1, vLa))
    e("  ds_write_b64 v%d, v[%d:%d] offset:%d" % (vWM, vA, vA + 1, mlbase))
    e("  s_mov_b64 exec, -1")
    e("  s_waitcnt lgkmcnt(0)")
    e("  s_barrier")
    e("L_w2:")
    rML = vQ
    for w in range(NP):
        e("  ds_read_b64 v[%d:%d], v%d offset:%d" % (rML + 2 * w, rML + 2 * w + 1, vRM, mlbase + w * 32))
    e("  s_lshl_b32 s%d, s%d, 8" % (sTmp, sW))
    e("  s_waitcnt lgkmcnt(0)")
    e("  v_max3_f32 v%d, v%d, v%d, v%d" % (vX, rML, rML + 2, rML + 4))
    e("  v_max3_f32 v%d, v%d, v%d, v%d" % (vX, vX, rML + 6, rML + 8), "global max")
    e("  v_sub_f32 v%d, v%d, v%d" % (vA, vM, vX))
    for w in range(NP): e("  v_sub_f32 v%d, v%d, v%d" % (rML + 2 * w, rML + 2 * w, vX))
    e("  v_exp_f32 v%d, v%d" % (vA, vA))
    for w in range(NP): e("  v_exp_f32 v%d, v%d" % (rML + 2 * w, rML + 2 * w))
    e("  s_nop 0")
    e("  v_mul_f32 v%d, v%d, v%d" % (vY, rML, rML + 1))
    for w in range(1, NP): e("  v_fmac_f32 v%d, v%d, v%d" % (vY, rML + 2 * w, rML + 2 * w + 1))
    e("  v_rcp_f32 v%d, v%d" % (vY, vY), "1 / global sum")
    e("  s_cmp_eq_u32 s%d, 2" % sRet)
    e("  v_mul_f32 v%d, v%d, v%d" % (vA, vA, vY), "this wave's final weight")
    scale(vO, 32)
    e("  s_cbranch_scc1 L_wr")
    scale(vS, 8)
    cvtP()
    e("  s_waitcnt vmcnt(4)")
    perms(0, range(4))
    e("  v_lshlrev_b32 v%d, 2, v0" % vX)
    e("  s_waitcnt vmcnt(0)")
    if stamps: e("  s_memrealtime s[64:65]")
    pvall(["  s_nop 1"])
    if stamps:
        e("  s_memrealtime s[58:59]"); e("  s_waitcnt lgkmcnt(0)"); e("  v_writelane_b32 v%d, s64, 15" % vSt)
    e("L_wr:")
    e("  s_mov_b64 exec, s[%d:%d]" % (sMask, sMask + 1))
    e("  s_cmp_eq_u32 s%d, %d" % (sRet, 1 if warm else 2))
    for jd in range(8):
        if jd == 4: e("  s_nop 1")
        e("  ds_write_b128 v%d, v[%d:%d] offset:%d" % (vWO, vO + 4 * jd, vO + 4 * jd + 3, jd * 16))
    e("  s_mov_b64 exec, -1")
    e("  s_waitcnt lgkmcnt(0)")
    if warm:
        e("  s_cbranch_scc1 L_sum")
        e("  s_cmp_eq_u32 s%d, 2" % sRet)
    e("  s_barrier")
    e("  s_cbranch_scc1 L_end")
    e("L_sum:")
    rO = vQ
    e("  ds_read2_b32 v[%d:%d], v%d offset0:0 offset1:4" % (rO, rO + 1, vRO))
    for w in range(1, NP):
        e("  ds_read_b32 v%d, v%d offset:%d" % (rO + 2 * w, vRO, w * 2048))
        e("  ds_read_b32 v%d, v%d offset:%d" % (rO + 2 * w + 1, vRO, w * 2048 + 16))
    e("  s_waitcnt lgkmcnt(4)")
    e("  v_pk_add_f32 v[%d:%d], v[%d:%d], v[%d:%d]" % (rO, rO + 1, rO, rO + 1, rO + 2, rO + 3))
    e("  v_pk_add_f32 v[%d:%d], v[%d:%d], v[%d:%d]" % (rO, rO + 1, rO, rO + 1, rO + 4, rO + 5))
    e("  s_waitcnt lgkmcnt(0)")
    e("  v_pk_add_f32 v[%d:%d], v[%d:%d], v[%d:%d]" % (rO + 6, rO + 7, rO + 6, rO + 7, rO + 8, rO + 9))
    e("  v_pk_add_f32 v[%d:%d], v[%d:%d], v[%d:%d]" % (rO, rO + 1, rO, rO + 1, rO + 6, rO + 7))
    e("  v_cvt_pk_bf16_f32 v%d, v%d, v%d" % (rO, rO, rO + 1))
    e("  buffer_store_dword v%d, v%d, s[%d:%d], s%d offen %s" % (rO, vX, sO_, sO_ + 3, sTmp, oflags))
    if warm: e("  s_cbranch_scc1 L_help2")
    if stamps:
        e("  s_waitcnt vmcnt(0)"); e("  s_memrealtime s[52:53]"); e("  s_load_dwordx2 s[20:21], s[0:1], 64"); e("  s_mov_b32 s22, 0x100000")
        e("  s_getreg_b32 s54, hwreg(HW_REG_XCC_ID)"); e("  s_getreg_b32 s55, hwreg(HW_REG_HW_ID)"); e("  s_waitcnt lgkmcnt(0)")
        for i, sr in enumerate([50, 56, 58, 52, 54, 55, 60, 62]): e("  v_mov_b32 v%d, s%d" % (16 + i, sr))
        e("  s_mul_i32 s47, s2, %d" % W); e("  s_add_u32 s47, s47, s40"); e("  s_lshl_b32 s47, s47, 5")
        e("  v_lshlrev_b32 v12, 2, v0"); e("  s_lshl_b32 s46, s47, 3"); e("  s_add_u32 s46, s46, 0x20000")
        e("  buffer_store_dword v%d, v12, s[20:23], s46 offen" % vSt)
        e("  v_cmp_eq_u32 vcc, 0, v0"); e("  s_and_saveexec_b64 s[48:49], vcc")
        e("  buffer_store_dwordx4 v[16:19], off, s[20:23], s47"); e("  buffer_store_dwordx4 v[20:23], off, s[20:23], s47 offset:16")
    e("L_end:")
    e("  s_endpgm")
    cm("helper wave: tree token partial (m = score + mask bias, l = 1, O = v_tree)")
    e("L_helper:")
    if hdelay: e("  s_barrier", "keep out of the way while the streaming waves start up")
    e("  s_add_u32 s%d, s4, s%d" % (sQ, sIt))
    e("  s_addc_u32 s%d, s5, 0" % (sQ + 1))
    if warm:
        e("  s_mov_b32 s%d, s16" % sO_)
        e("  s_mov_b32 s%d, s17" % (sO_ + 1))
        e("  s_mov_b32 s%d, 0" % (sO_ + 2), "zero records: the dry pass below stores nothing")
        e("  s_mov_b32 s%d, 0x00020000" % (sO_ + 3))
    e("  v_mov_b32 v%d, v%d" % (vKo, vA))
    e("  v_lshlrev_b32 v%d, 6, v%d" % (vKo + 1, vY))
    lds_addrs()
    e("  s_mov_b32 s%d, %s" % (sC, f32hex(c)))
    if warm:
        for jj in range(4): e("  v_mov_b32 v%d, v%d" % (vKr + jj, vVoff))
        e("  s_mov_b32 s%d, 0x05040100" % sSelLo)
        e("  s_mov_b32 s%d, 0x07060302" % sSelHi)
        e("  s_mov_b32 s%d, 1" % sRet)
        e("  s_branch L_tail", "dry pass through the tail code (instruction cache), no global access")
    e("L_help2:")
    e("  s_mov_b32 s%d, 2" % sRet)
    if warm:
        e("  v_mov_b32 v%d, v%d" % (vA, vKo))
        for i in range(0, 16, 2): e("  v_mov_b64 v[%d:%d], 0" % (vQ + i, vQ + i + 1))
    qloads()
    e("  s_lshl_b32 s%d, s2, 8" % sTmp)
    e("  s_add_u32 s%d, s10, s%d" % (sT, sTmp))
    e("  s_addc_u32 s%d, s11, 0" % (sT + 1))
    e("  s_mov_b32 s%d, 256" % (sT + 2))
    e("  s_mov_b32 s%d, 0x00020000" % (sT + 3))
    for j in range(4):
        e("  buffer_load_dwordx4 v[%d:%d], v%d, s[%d:%d], 0 offen offset:%d" % (vT + 4 * j, vT + 4 * j + 3, vA, sT, sT + 3, j * 64))
    e("  s_add_u32 s%d, s12, s%d" % (sT, sTmp))
    e("  s_addc_u32 s%d, s13, 0" % (sT + 1))
    for r in range(4):
        e("  buffer_load_dwordx4 v[%d:%d], v%d, s[%d:%d], 0 offen offset:%d" % (vU + 4 * r, vU + 4 * r + 3, vKo + 1, sT, sT + 3, r * 16))
    e("  s_mov_b32 s%d, s14" % sT)
    e("  s_mov_b32 s%d, s15" % (sT + 1))
    e("  s_mov_b32 s%d, 64" % (sT + 2))
    e("  s_lshr_b32 s%d, s2, 3" % sTmp)
    e("  s_lshl_b32 s%d, s%d, 1" % (sTmp, sTmp))
    e("  buffer_load_ushort v%d, off, s[%d:%d], s%d" % (vNM, sT, sT + 3, sTmp), "tree_mask[b]")
    e("  v_mov_b32 v%d, %s" % (vM, f32hex(-3.0e38)))
    e("  s_waitcnt vmcnt(0)")
    for j in range(4):
        e("  v_mfma_f32_16x16x32_bf16 v[%d:%d], v[%d:%d], v[%d:%d], %s" %
          (vS, vS + 3, vT + 4 * j, vT + 4 * j + 3, vQ + 4 * j, vQ + 4 * j + 3, "0" if j == 0 else "v[%d:%d]" % (vS, vS + 3)))
    for r in range(4):
        for w in range(4):
            e("  v_lshlrev_b32 v%d, 16, v%d" % (vO + (2 * w) * 4 + r, vU + 4 * r + w))
            e("  v_and_b32 v%d, 0xffff0000, v%d" % (vO + (2 * w + 1) * 4 + r, vU + 4 * r + w))
    e("  v_lshlrev_b32 v%d, 16, v%d" % (vNM, vNM))
    e("  v_sub_f32 v%d, 1.0, v%d" % (vNM, vNM))
    e("  v_mul_f32 v%d, %s, v%d" % (vNM, f32hex(-1.0e9 * math.log2(math.e)), vNM), "(1-mask) * -1e9, log2 units")
    e("  v_fma_f32 v%d, v%d, s%d, v%d" % (vX, vS, sC, vNM))
    e("  v_cmp_gt_u32 vcc, 16, v0")
    e("  v_mov_b32 v%d, 1.0" % vLa)
    e("  s_nop 0")
    e("  v_cndmask_b32 v%d, v%d, v%d, vcc" % (vM, vM, vX))
    xmax(vM, vX)
    e("  s_branch L_xchg")
    L.append('.section .rodata,"a"'); L.append(".p2align 6"); L.append(".amdhsa_kernel %s" % KNAME)
    L.append("  .amdhsa_next_free_vgpr %d" % nv); L.append("  .amdhsa_next_free_sgpr 80"); L.append("  .amdhsa_accum_offset %d" % ((nv + 3) // 4 * 4))
    L.append("  .amdhsa_group_segment_fixed_size 0"); L.append("  .amdhsa_kernarg_size 72"); L.append("  .amdhsa_user_sgpr_count 2")
    L.append("  .amdhsa_user_sgpr_kernarg_segment_ptr 1"); L.append("  .amdhsa_system_sgpr_workgroup_id_x 1"); L.append(".end_amdhsa_kernel")
    out = []
    i = 0
    while i < len(L):
        if (i + 3 < len(L) and L[i].strip().startswith("s_waitcnt vmcnt") and " m0," in L[i + 1]
                and L[i + 2].strip() == "s_nop 0" and L[i + 3].rstrip().endswith(" lds")):
            out += [L[i + 1], L[i], L[i + 3]]
            i += 4
        else:
            out.append(L[i]); i += 1
    return "\n".join(out) + "\n"
```

```python
import math, struct
from gen1 import KNAME, HEADER, f32hex

def gen(G=256, stamps=False, oflags="sc1", warm=False, lds_pad=90000, tau4=870, c0=1, gsh=6, wmid=20, wmin=16, wmax=32,
        gb=(10, 11), jb=(8, 9), wb=(13, 18), tbit=12, wx=((12, "w", 1), (17, "b", 0)), D1=5, boost=1, Dt=8, kflags="nt", vflags="nt",
        doc="", hdelay=0, L0=None, lk=2, fixed=None, peel2=False, x4=0, w0=None, ga=None, g2=None):
    W, DP, NP, NST = 4, 8, 5, 16
    L = []
    def e(x, c=None): L.append(x + (("%s; %s" % (" " * max(1, 66 - len(x)), c)) if c else ""))
    def cm(c): L.append("  ; " + c)
    mlbase = NP * 2048
    ldsK = (mlbase + NP * 32 + 256 + 1023) // 1024 * 1024
    lds = max(ldsK + W * 8192, lds_pad)
    vKo = 1; vVoff = 5; vX, vY, vM, vNM = 6, 7, 8, 9; vA = 10
    vWO, vWM, vRO, vRM = 12, 13, 14, 15
    vQ = 16; vO = 32; vLa = 64; vOne = 68; vT = 72; vS = 104; vP = 112; vKr = 116; vSt = 120
    vK = 124; vV = [140, 156]; nv = 172
    vU = vT + 16
    sK, sV, sQ, sO_, sT = 20, 24, 28, 32, 36
    sW, sIt, sC, sSelLo, sSelHi, sTmp = 40, 43, 44, 45, 46, 47
    sOf = [[41, 42], [48, 49]]
    sMask = 52
    sM0 = [66, 67]
    sTm = 68
    sRet, sMode, sRef, sL, sL2, sRaw, sXor = 72, 74, 75, 76, 77, 78, 79
    c = math.log2(math.e) / math.sqrt(128.0)
    rest = [b for b in range(8, 19) if b not in gb and b not in jb and b not in wb and b != tbit]
    assert len(rest) == 4
    tb = 1 << tbit
    smask = sum(1 << b for b in rest)
    contiguous = rest == list(range(rest[0], rest[0] + 4))
    def dep(v, bits): return sum(((v >> i) & 1) << b for i, b in enumerate(bits))
    assert dep(3, jb) < 4096

    def loadK(ds, t, jj):
        if jj: e("  s_add_u32 m0, s%d, %d" % (sM0[t], jj * 1024))
        else: e("  s_mov_b32 m0, s%d" % sM0[t])
        e("  s_nop 0")
        e("  buffer_load_dwordx4 v%d, s[%d:%d], s%d offen %s lds" % (vKo + jj, sK, sK + 3, sOf[ds][t], kflags))
    def loadV(ds, t, jj):
        r = vV[t] + jj * 4
        e("  buffer_load_dwordx4 v[%d:%d], v%d, s[%d:%d], s%d offen offset:%d %s" % (r, r + 3, vVoff, sV, sV + 3, sOf[ds][t], dep(jj, jb), vflags))
    def load(m):
        ds, q, jj = m // 16, (m % 16) // 4, m % 4
        (loadV if q & 1 else loadK)(ds, q // 2, jj)
    def nextraw():
        if contiguous:
            e("  s_add_u32 s%d, s%d, %d" % (sRaw, sRaw, 1 << rest[0]))
        else:
            e("  s_or_b32 s%d, s%d, 0x%x" % (sRaw, sRaw, (~smask) & 0x7ffff & ~((1 << rest[0]) - 1)))
            e("  s_add_u32 s%d, s%d, %d" % (sRaw, sRaw, 1 << rest[0]))
            e("  s_and_b32 s%d, s%d, 0x%x" % (sRaw, sRaw, smask))
        e("  s_xor_b32 s%d, s%d, s%d" % (sOf[1][0], sRaw, sXor), "offset of the next stage's tile 0")
        e("  s_xor_b32 s%d, s%d, %d" % (sOf[1][1], sOf[1][0], tb), "                         tile 1")
    def qloads():
        e("  s_mov_b64 exec, s[%d:%d]" % (sMask, sMask + 1))
        for j in range(4):
            e("  buffer_load_dwordx4 v[%d:%d], v%d, s[%d:%d], 0 offen offset:%d" % (vQ + 4 * j, vQ + 4 * j + 3, vA, sQ, sQ + 3, j * 64))
        e("  s_mov_b64 exec, -1")
    def lds_addrs():
        e("  v_lshl_add_u32 v%d, v%d, 2, v%d" % (vWO, vX, vY))
        e("  v_lshlrev_b32 v%d, 7, v%d" % (vWO, vWO))
        e("  s_lshl_b32 s%d, s%d, 11" % (sTmp, sW))
        e("  v_add_u32 v%d, s%d, v%d" % (vWO, sTmp, vWO), "O partial write: w*2048 + (h*4+g)*128")
        e("  v_lshlrev_b32 v%d, 3, v%d" % (vRM, vX), "(m,l) read: h*8")
        e("  s_lshl_b32 s%d, s%d, 5" % (sTmp, sW))
        e("  v_add_u32 v%d, s%d, v%d" % (vWM, sTmp, vRM), "(m,l) write: w*32 + h*8")
        e("  v_lshlrev_b32 v%d, 7, v%d" % (vRO, vY))
        e("  v_and_b32 v%d, 3, v0" % vM)
        e("  v_lshl_add_u32 v%d, v%d, 5, v%d" % (vRO, vM, vRO))
        e("  v_bfe_u32 v%d, v0, 2, 2" % vM)
        e("  v_lshl_add_u32 v%d, v%d, 2, v%d" % (vRO, vM, vRO))
        e("  s_and_b32 s%d, s%d, 3" % (sTmp, sW))
        e("  s_lshl_b32 s%d, s%d, 9" % (sTmp, sTmp))
        e("  v_add_u32 v%d, s%d, v%d" % (vRO, sTmp, vRO), "O read: head*512 + g*128 + (e&3)*32 + r*4")
    def waits(q):
        if fixed:
            def verf(Ds, last=False):
                for n in range(4 * q, 4 * q + 4):
                    e("  s_waitcnt vmcnt(%d)" % (Ds[n % len(Ds)] - 1))
                    if last: loadK(1, 1, n % 4)
                    else: load(n + DP)
            if q == 3:
                e("  s_cmp_eq_u32 s%d, %d" % (sIt, NST - 2))
                e("  s_cbranch_scc1 L_g3_last")
            if boost:
                e("  s_cmp_ge_u32 s%d, %d" % (sIt, NST - 1 - boost + (1 if q < 2 else 0)))
                e("  s_cbranch_scc1 L_g%d_hi" % q)
            verf(fixed)
            if boost:
                e("  s_branch L_join%d" % q)
                e("L_g%d_hi:" % q)
                verf([Dt])
            if q == 3:
                e("  s_branch L_join3")
                e("L_g3_last:")
                verf([Dt], last=True)
            e("L_join%d:" % q)
            return
        off = (0, 2, 1, 3)[(q + 2) % 4]
        dlo, dhi = wmin // 4, DP
        order = sorted(range(dlo, dhi + 1), key=lambda d: abs(4 * d + 1 - wmid))
        def ver(D, last=False):
            for n in range(4 * q, 4 * q + 4):
                e("  s_waitcnt vmcnt(%d)" % (D - 1))
                if last: loadK(1, 1, n % 4)
                else: load(n + DP)
        if q == 3:
            e("  s_cmp_eq_u32 s%d, %d" % (sIt, NST - 2))
            e("  s_cbranch_scc1 L_g3_last")
        e("  s_add_u32 s%d, s%d, %d" % (sL, sMode, off))
        e("  s_lshr_b32 s%d, s%d, 2" % (sL, sL))
        e("  s_min_u32 s%d, s%d, %d" % (sL, sL, dhi), "window depth of this group")
        for d in order[1:]:
            e("  s_cmp_eq_u32 s%d, %d" % (sL, d))
            e("  s_cbranch_scc1 L_g%d_d%d" % (q, d))
        ver(order[0])
        for d in order[1:]:
            e("  s_branch L_join%d" % q)
            e("L_g%d_d%d:" % (q, d))
            ver(d)
        if q == 3:
            e("  s_branch L_join3")
            e("L_g3_last:")
            ver(Dt, last=True)
        e("L_join%d:" % q)
    def setmode():
        e("  s_waitcnt lgkmcnt(0)")
        e("  s_lshl_b32 s%d, s%d, 2" % (sL, sTm))
        e("  s_cmp_le_u32 s%d, %d" % (sIt, c0))
        if x4:
            e("  s_sub_u32 s%d, s%d, s73" % (sL2, sL))
            e("  s_cselect_b32 s%d, s%d, s%d" % (sL2, sL2, sL2))
            e("  s_cmp_le_u32 s%d, %d" % (sIt, c0))
            e("  s_cselect_b32 s%d, s%d, s%d" % (sRef, sL2, sRef))
        else:
            e("  s_cselect_b32 s%d, s%d, s%d" % (sRef, sL, sRef), "line starts at this wave's own early progress")
        if ga:
            c1, margin, clampv = ga
            def publish(tag, at, off, save):
                e("  s_cmp_eq_u32 s%d, %d" % (sIt, at))
                e("  s_cbranch_scc0 L_nopub%s" % tag)
                e("  s_mov_b32 s%d, s%d" % (save, sL))
                e("  s_cmp_eq_u32 s89, 0")
                e("  s_cbranch_scc0 L_nopub%s" % tag)
                e("  v_mov_b32 v%d, s%d" % (vSt + 1, sL))
                e("  s_mov_b64 exec, 1")
                e("  buffer_store_dword v%d, off, s[%d:%d], s90 offset:%d sc1" % (vSt + 1, sT, sT + 3, off), "sample wave: publish progress hint")
                e("  s_mov_b64 exec, -1")
                e("L_nopub%s:" % tag)
            def mean8(tag, at, own):
                e("  s_cmp_eq_u32 s%d, %d" % (sIt, at))
                e("  s_cbranch_scc0 L_noad%s" % tag)
                e("  s_min_u32 s91, s80, s81")
                for i in range(2, 8): e("  s_min_u32 s91, s91, s%d" % (80 + i))
                e("  s_cmp_eq_u32 s91, 0")
                e("  s_cbranch_scc1 L_noad%s" % tag)
                e("  s_sub_i32 s91, s80, s%d" % own)
                for i in range(1, 8):
                    e("  s_sub_i32 s%d, s%d, s%d" % (80 + i, 80 + i, own))
                    e("  s_add_i32 s91, s91, s%d" % (80 + i))
                e("  s_ashr_i32 s91, s91, 3")
            publish("A", c0, 0, 88)
            mean8("A", c1, 88)
            e("  s_add_u32 s93, s88, s91", "mean time of the first checkpoint")
            e("  s_sub_i32 s91, s91, %d" % margin)
            e("  s_min_i32 s91, s91, %d" % clampv)
            e("  s_max_i32 s91, s91, %d" % -clampv)
            e("  s_add_u32 s%d, s%d, s91" % (sRef, sRef))
            e("L_noadA:")
            if g2:
                p2, r2, delta, margin2 = g2
                sh = int(math.log2(p2 - c0)); assert 1 << sh == p2 - c0
                publish("B", p2, 128, 92)
                mean8("B", r2, 92)
                e("  s_min_i32 s91, s91, 600")
                e("  s_max_i32 s91, s91, -600")
                e("  s_add_u32 s91, s92, s91", "mean time of the second checkpoint")
                e("  s_cmp_eq_u32 s93, 0")
                e("  s_cbranch_scc1 L_noadB")
                e("  s_sub_i32 s94, s91, s93")
                e("  s_ashr_i32 s94, s94, %d" % sh)
                e("  s_sub_i32 s94, s94, %d" % delta)
                e("  s_max_i32 s94, s94, %d" % tau4)
                e("  s_min_i32 s94, s94, %d" % (tau4 + 120), "measured stage time")
                e("  s_mul_i32 s%d, s94, %d" % (sRef, r2 - p2))
                e("  s_add_u32 s%d, s%d, s91" % (sRef, sRef))
                e("  s_sub_u32 s%d, s%d, %d" % (sRef, sRef, margin2))
                e("L_noadB:")
        e("  s_sub_i32 s%d, s%d, s%d" % (sL2, sL, sRef), "lag behind the progress line")
        if g2: e("  s_add_u32 s%d, s%d, s94" % (sRef, sRef))
        else: e("  s_add_u32 s%d, s%d, %d" % (sRef, sRef, tau4))
        if L0 is not None:
            e("  s_sub_i32 s%d, s%d, %d" % (sL, sL2, L0))
            e("  s_max_i32 s%d, s%d, 0" % (sL, sL))
            e("  s_lshr_b32 s%d, s%d, %d" % (sL, sL, lk))
            e("  s_add_u32 s%d, s%d, s%d" % (sRef, sRef, sL), "memory slower than the schedule: let the schedule slip")
        e("  s_add_i32 s%d, s%d, %d" % (sL2, sL2, (1 << (gsh - 1)) + (wmid << gsh)))
        e("  s_ashr_i32 s%d, s%d, %d" % (sL2, sL2, gsh))
        e("  s_min_i32 s%d, s%d, %d" % (sL2, sL2, wmax))
        e("  s_max_i32 s%d, s%d, %d" % (sMode, sL2, wmin), "window in quarter loads")
        if boost:
            e("  s_cmp_ge_u32 s%d, %d" % (sIt, NST - 1 - boost))
            e("  s_cselect_b32 s%d, %d, s%d" % (sMode, 4 * Dt, sMode))
    def qk(t):
        d = vS + 4 * t
        for jj in range(4):
            e("  ds_read_b128 v[%d:%d], v%d offset:%d" % (vK + 4 * jj, vK + 4 * jj + 3, vKr + jj, t * 4096))
        for j in range(4):
            e("  s_waitcnt lgkmcnt(%d)" % (3 - j))
            e("  v_mfma_f32_16x16x32_bf16 v[%d:%d], v[%d:%d], v[%d:%d], %s" %
              (d, d + 3, vK + 4 * j, vK + 4 * j + 3, vQ + 4 * j, vQ + 4 * j + 3, "0" if j == 0 else "v[%d:%d]" % (d, d + 3)))
    def perms(t, ws):
        for w in ws:
            for hh, sel in ((0, sSelLo), (1, sSelHi)):
                for u in range(2):
                    e("  v_perm_b32 v%d, v%d, v%d, s%d" % (vT + (2 * w + hh) * 4 + 2 * t + u, vV[t] + (2 * u + 1) * 4 + w, vV[t] + (2 * u) * 4 + w, sel))
    def pv(jd):
        o = vO + jd * 4
        e("  v_mfma_f32_16x16x32_bf16 v[%d:%d], v[%d:%d], v[%d:%d], v[%d:%d]" % (o, o + 3, vT + 4 * jd, vT + 4 * jd + 3, vP, vP + 3, o, o + 3))
    def pvall(fill):
        perms(1, [0]); perms(1, [1]); pv(0); pv(1); perms(1, [2]); pv(2); pv(3); perms(1, [3]); pv(4); pv(5)
        for x in fill: e(x)
        pv(6); pv(7)
    def lsum():
        e("  v_mfma_f32_16x16x32_bf16 v[%d:%d], v[%d:%d], v[%d:%d], v[%d:%d]" % (vLa, vLa + 3, vOne, vOne + 3, vP, vP + 3, vLa, vLa + 3), "l += sum_k P")
    def xmax(a, t):
        e("  v_mov_b32 v%d, v%d" % (t, a)); e("  s_nop 1")
        e("  v_permlane32_swap_b32 v%d, v%d" % (a, t)); e("  s_nop 1")
        e("  v_max_f32 v%d, v%d, v%d" % (a, a, t))
        e("  v_mov_b32 v%d, v%d" % (t, a)); e("  s_nop 1")
        e("  v_permlane16_swap_b32 v%d, v%d" % (a, t)); e("  s_nop 1")
        e("  v_max_f32 v%d, v%d, v%d" % (a, a, t))
    def scale(r0, n):
        for i in range(n // 2):
            e("  v_pk_mul_f32 v[%d:%d], v[%d:%d], v[%d:%d] op_sel_hi:[1,0]" % (r0 + 2 * i, r0 + 2 * i + 1, r0 + 2 * i, r0 + 2 * i + 1, vA, vA + 1))
    def cvtP():
        for u in range(4):
            e("  v_cvt_pk_bf16_f32 v%d, v%d, v%d" % (vP + u, vS + 2 * u, vS + 2 * u + 1))
    def softmax(tag):
        e("  s_nop 7")
        e("  v_max3_f32 v%d, v%d, v%d, v%d" % (vX, vS, vS + 1, vS + 2))
        e("  v_max3_f32 v%d, v%d, v%d, v%d" % (vY, vS + 3, vS + 4, vS + 5))
        e("  v_max3_f32 v%d, v%d, v%d, v%d" % (vX, vX, vS + 6, vS + 7))
        e("  v_max_f32 v%d, v%d, v%d" % (vX, vX, vY))
        xmax(vX, vY)
        e("  v_mul_f32 v%d, s%d, v%d" % (vX, sC, vX), "stage max, log2 units")
        e("  v_cmp_gt_f32 vcc, v%d, v%d" % (vX, vM))
        e("  s_and_b64 vcc, vcc, s[%d:%d]" % (sMask, sMask + 1))
        e("  s_cbranch_scc0 L_nors%s" % tag, "running max unchanged: factor would be exactly 1")
        e("  v_max_f32 v%d, v%d, v%d" % (vX, vX, vM))
        e("  v_sub_f32 v%d, v%d, v%d" % (vA, vM, vX))
        e("  v_exp_f32 v%d, v%d" % (vA, vA))
        e("  v_mov_b32 v%d, v%d" % (vM, vX))
        e("  v_mul_f32 v%d, v%d, v%d" % (vLa, vLa, vA))
        scale(vO, 32)
        e("L_nors%s:" % tag)
        for i in range(8): e("  v_fma_f32 v%d, v%d, s%d, -v%d" % (vS + i, vS + i, sC, vM))
        for i in range(8): e("  v_exp_f32 v%d, v%d" % (vS + i, vS + i))
        e("  s_nop 0")
        cvtP()

    L.append(HEADER.rstrip("\n"))
    L.append("; @launch grid=(%d,1,1) block=(%d,1,1) lds=%d" % (G, NP * 64, lds))
    if doc: L.append(doc.rstrip("\n"))
    L.append('.amdgcn_target "amdgcn-amd-amdhsa--gfx950"')
    L.append(".text"); L.append(".globl %s" % KNAME); L.append(".p2align 8"); L.append(".type %s,@function" % KNAME); L.append("%s:" % KNAME)
    e("  s_load_dwordx16 s[4:19], s[0:1], 0", "q k v k_tree v_tree mask out debug")
    if stamps: e("  s_memrealtime s[50:51]")
    e("  s_cmp_ge_u32 s2, 256")
    e("  s_cbranch_scc1 L_end", "extra workgroups")
    e("  s_and_b32 s3, s2, 7")
    e("  s_lshr_b32 s2, s2, 3")
    e("  s_lshl_b32 s3, s3, 5")
    e("  s_or_b32 s2, s2, s3", "bh = (id&7)*32 + (id>>3)  (b*8 + kv head)")
    e("  v_lshrrev_b32 v%d, 6, v0" % vX)
    e("  v_and_b32 v0, 63, v0", "lane")
    e("  v_readfirstlane_b32 s%d, v%d" % (sW, vX), "wave")
    e("  v_lshrrev_b32 v%d, 4, v0" % vY, "g = lane>>4")
    e("  v_and_b32 v%d, 15, v0" % vX, "c = lane&15")
    e("  v_lshlrev_b32 v%d, 4, v%d" % (vVoff, vX))
    if gb[1] == gb[0] + 1:
        e("  v_lshl_add_u32 v%d, v%d, %d, v%d" % (vVoff, vY, gb[0], vVoff), "V lane offset = row(g) + c*16")
    else:
        e("  v_and_b32 v%d, 1, v%d" % (vM, vY)); e("  v_lshl_add_u32 v%d, v%d, %d, v%d" % (vVoff, vM, gb[0], vVoff))
        e("  v_lshrrev_b32 v%d, 1, v%d" % (vM, vY)); e("  v_lshl_add_u32 v%d, v%d, %d, v%d" % (vVoff, vM, gb[1], vVoff))
    e("  v_lshlrev_b32 v%d, 6, v%d" % (vM, vY))
    e("  v_xor_b32 v%d, v%d, v%d" % (vKo, vVoff, vM), "K lane offsets: 16-B chunk xor-swizzled by 4g+j")
    for j in range(1, 4): e("  v_xor_b32 v%d, %d, v%d" % (vKo + j, j * 16 + dep(j, jb), vKo))
    e("  s_lshl_b32 s%d, s%d, 13" % (sM0[0], sW))
    e("  s_add_u32 s%d, s%d, %d" % (sM0[0], sM0[0], ldsK))
    e("  s_add_u32 s%d, s%d, 4096" % (sM0[1], sM0[0]), "LDS slots of this wave's two K tiles")
    e("  v_lshlrev_b32 v%d, 8, v%d" % (vNM, vX))
    e("  v_lshl_add_u32 v%d, v%d, 4, v%d" % (vA, vY, vNM), "Q lane offset = head*256 + g*16")
    e("  v_cmp_gt_u32 s[%d:%d], 4, v%d" % (sMask, sMask + 1, vX), "lanes of the 4 real head columns")
    e("  s_lshl_b32 s%d, s2, 19" % sTmp)
    e("  s_and_b32 s%d, s%d, 1" % (sXor, sW))
    e("  s_lshl_b32 s%d, s%d, %d" % (sXor, sXor, wb[0]))
    e("  s_bfe_u32 s%d, s%d, 0x10001" % (sL, sW))
    e("  s_lshl_b32 s%d, s%d, %d" % (sL2, sL, wb[1]))
    e("  s_or_b32 s%d, s%d, s%d" % (sXor, sXor, sL2))
    for b, src, i in wx:
        if (src, i) != ("w", 1):
            e("  s_bfe_u32 s%d, s%d, 0x%x" % (sL2, sW if src == "w" else 2, 0x10000 | i))
            e("  s_lshl_b32 s%d, s%d, %d" % (sL2, sL2, b))
        else:
            e("  s_lshl_b32 s%d, s%d, %d" % (sL2, sL, b))
        e("  s_xor_b32 s%d, s%d, s%d" % (sXor, sXor, sL2))
    e("  s_mov_b32 s%d, s%d" % (sOf[0][0], sXor), "stage 0, tile 0")
    e("  s_xor_b32 s%d, s%d, %d" % (sOf[0][1], sXor, tb), "stage 0, tile 1")
    e("  s_mov_b32 s%d, 0x00020000" % (sK + 3))
    e("  s_mov_b32 s%d, 0x00020000" % (sV + 3))
    e("  s_mov_b32 s%d, 0x80000" % (sK + 2))
    e("  s_mov_b32 s%d, 0x80000" % (sV + 2))
    e("  s_lshl_b32 s%d, s2, 10" % sIt)
    e("  s_mov_b32 s%d, 1024" % (sQ + 2))
    e("  s_mov_b32 s%d, 0x00020000" % (sQ + 3))
    for i in range(0, 16, 2): e("  v_mov_b64 v[%d:%d], 0" % (vQ + i, vQ + i + 1))
    e("  s_cmp_eq_u32 s%d, %d" % (sW, W))
    e("  s_waitcnt lgkmcnt(0)")
    e("  s_cbranch_scc1 L_helper")
    if stamps: e("  s_memrealtime s[60:61]")
    e("  s_add_u32 s%d, s8, s%d" % (sV, sTmp))
    e("  s_addc_u32 s%d, s9, 0" % (sV + 1))
    for jj in range(4): loadV(0, 0, jj)
    e("  s_add_u32 s%d, s6, s%d" % (sK, sTmp))
    e("  s_addc_u32 s%d, s7, 0" % (sK + 1))
    for jj in range(4): loadK(0, 0, jj)
    e("  s_add_u32 s%d, s4, s%d" % (sQ, sIt))
    e("  s_addc_u32 s%d, s5, 0" % (sQ + 1))
    qloads()
    e("  s_add_u32 s%d, s16, s%d" % (sO_, sIt))
    e("  s_addc_u32 s%d, s17, 0" % (sO_ + 1))
    e("  s_mov_b32 s%d, 1024" % (sO_ + 2))
    e("  s_mov_b32 s%d, 0x00020000" % (sO_ + 3))
    e("  s_mov_b32 s%d, 0" % sRaw)
    nextraw()
    e("  s_mov_b32 s%d, %s" % (sC, f32hex(c)), "log2(e)/sqrt(128)")
    e("  s_mov_b32 s%d, 0x05040100" % sSelLo)
    e("  s_mov_b32 s%d, 0x07060302" % sSelHi)
    e("  s_mov_b32 s%d, 0" % sIt)
    e("  s_mov_b32 s%d, 0" % sRet)
    if ga:
        e("  s_and_b32 s89, s2, 31")
        e("  s_or_b32 s89, s89, s%d" % sW)
        e("  s_lshr_b32 s90, s2, 3")
        e("  s_and_b32 s90, s90, 28")
        e("  s_mov_b32 s%d, s18" % sT); e("  s_mov_b32 s%d, s19" % (sT + 1)); e("  s_mov_b32 s%d, 256" % (sT + 2)); e("  s_mov_b32 s93, 0"); e("  s_mov_b32 s94, %d" % tau4); e("  s_mov_b32 s%d, 0x00020000" % (sT + 3))
    e("  s_mov_b32 s%d, %d" % (sMode, w0 if w0 else wmid))
    if x4:
        e("  s_cmp_eq_u32 s3, 128")
        e("  s_cselect_b32 s73, %d, 0" % x4)
    e("  v_xor_b32 v%d, v%d, v%d" % (vKr, vX, vY))
    e("  v_lshlrev_b32 v%d, 4, v%d" % (vKr, vKr))
    e("  v_and_b32 v%d, 3, v0" % vWO)
    e("  v_lshl_add_u32 v%d, v%d, 10, v%d" % (vKr, vWO, vKr))
    e("  v_bfe_u32 v%d, v0, 2, 2" % vWO)
    e("  v_lshl_add_u32 v%d, v%d, 8, v%d" % (vKr, vWO, vKr))
    e("  v_add_u32 v%d, s%d, v%d" % (vKr, sM0[0], vKr), "K fragment read addresses (A operand)")
    for jj in range(1, 4): e("  v_xor_b32 v%d, %d, v%d" % (vKr + jj, jj * 64, vKr))
    lds_addrs()
    e("  v_mov_b32 v%d, %s" % (vM, f32hex(-3.0e38)), "running max")
    for i in range(4): e("  v_mov_b32 v%d, 0x3f803f80" % (vOne + i))
    for i in range(0, 36, 2): e("  v_mov_b64 v[%d:%d], 0" % (vO + i, vO + i + 1))
    if stamps: e("  s_memrealtime s[62:63]")
    cm("first group: V0, K0, Q were issued in that order")
    for n in range(8 if peel2 else 4):
        e("  s_waitcnt vmcnt(%d)" % (D1 - 1 + (4 if n < D1 - 1 else 0)))
        if stamps and n == 0: e("  s_memrealtime s[56:57]")
        load(n + DP)
    e("  s_waitcnt vmcnt(%d)" % (8 if peel2 else 4))
    if stamps: e("  s_waitcnt lgkmcnt(0)")
    if hdelay == 1: e("  s_barrier", "releases the helper wave")
    e("  s_branch L_mid")

    e("L_loop:")
    waits(0)
    e("L_mid:")
    qk(0)
    if not fixed: e("  s_memrealtime s[%d:%d]" % (sTm, sTm + 1))
    if ga:
        e("  s_cmp_eq_u32 s%d, %d" % (sIt, ga[0]))
        e("  s_cbranch_scc0 L_nold")
        e("  s_load_dwordx8 s[80:87], s[18:19], 0")
        e("L_nold:")
        if g2:
            e("  s_cmp_eq_u32 s%d, %d" % (sIt, g2[1]))
            e("  s_cbranch_scc0 L_nold2")
            e("  s_load_dwordx8 s[80:87], s[18:19], 128")
            e("L_nold2:")
    if peel2:
        e("  s_cmp_eq_u32 s%d, 0" % sIt)
        e("  s_cbranch_scc1 L_join1", "stage 0: these loads were issued in the prologue")
    waits(1)
    perms(0, range(4))
    if not fixed: setmode()
    waits(2)
    qk(1)
    softmax("")
    waits(3)
    if stamps: e("  s_memrealtime s[64:65]")
    lsum()
    pvall(["  s_mov_b32 s%d, s%d" % (sOf[0][0], sOf[1][0]), "  s_mov_b32 s%d, s%d" % (sOf[0][1], sOf[1][1])])
    nextraw()
    if stamps:
        e("  s_mov_b32 m0, s%d" % sIt); e("  s_waitcnt lgkmcnt(0)"); e("  v_writelane_b32 v%d, s64, m0" % vSt)
    if hdelay == 2:
        e("  s_cmp_eq_u32 s%d, 2" % sIt)
        e("  s_cbranch_scc0 L_nb")
        e("  s_barrier", "releases the helper wave")
        e("L_nb:")
    e("  s_add_u32 s%d, s%d, 1" % (sIt, sIt))
    e("  s_cmp_lt_u32 s%d, %d" % (sIt, NST - 1))
    e("  s_cbranch_scc1 L_loop")
    cm("last stage: K0, K1 are in flight; V0, V1 follow as they land")
    for jj in range(4):
        e("  s_waitcnt vmcnt(%d)" % (Dt - 1)); loadV(0, 0, jj)
    e("L_tail:")
    qk(0)
    if warm:
        e("  s_cmp_eq_u32 s%d, 1" % sRet)
        e("  s_cbranch_scc1 L_tail2")
    for jj in range(4):
        e("  s_waitcnt vmcnt(%d)" % (Dt - 1)); loadV(0, 1, jj)
    e("L_tail2:")
    qk(1)
    softmax("T")
    if warm:
        e("  s_cmp_eq_u32 s%d, 1" % sRet)
        e("  s_nop 0")
        lsum()
        e("  s_cbranch_scc1 L_w2")
        e("  s_nop 5")
    else:
        e("  s_nop 1")
        lsum()
        e("  s_nop 6")
    e("L_xchg:")
    e("  s_mov_b64 exec, s[%d:%d]" % (sMask, sMask + 1))
    e("  v_mov_b32 v%d, v%d" % (vA, vM))
    e("  v_mov_b32 v%d, v%d" % (vA + 1, vLa))
    e("  ds_write_b64 v%d, v[%d:%d] offset:%d" % (vWM, vA, vA + 1, mlbase))
    e("  s_mov_b64 exec, -1")
    e("  s_waitcnt lgkmcnt(0)")
    e("  s_barrier")
    e("L_w2:")
    rML = vQ
    for w in range(NP):
        e("  ds_read_b64 v[%d:%d], v%d offset:%d" % (rML + 2 * w, rML + 2 * w + 1, vRM, mlbase + w * 32))
    e("  s_lshl_b32 s%d, s%d, 8" % (sTmp, sW))
    e("  s_waitcnt lgkmcnt(0)")
    e("  v_max3_f32 v%d, v%d, v%d, v%d" % (vX, rML, rML + 2, rML + 4))
    e("  v_max3_f32 v%d, v%d, v%d, v%d" % (vX, vX, rML + 6, rML + 8), "global max")
    e("  v_sub_f32 v%d, v%d, v%d" % (vA, vM, vX))
    for w in range(NP): e("  v_sub_f32 v%d, v%d, v%d" % (rML + 2 * w, rML + 2 * w, vX))
    e("  v_exp_f32 v%d, v%d" % (vA, vA))
    for w in range(NP): e("  v_exp_f32 v%d, v%d" % (rML + 2 * w, rML + 2 * w))
    e("  s_nop 0")
    e("  v_mul_f32 v%d, v%d, v%d" % (vY, rML, rML + 1))
    for w in range(1, NP): e("  v_fmac_f32 v%d, v%d, v%d" % (vY, rML + 2 * w, rML + 2 * w + 1))
    e("  v_rcp_f32 v%d, v%d" % (vY, vY), "1 / global sum")
    e("  s_cmp_eq_u32 s%d, 2" % sRet)
    e("  v_mul_f32 v%d, v%d, v%d" % (vA, vA, vY), "this wave's final weight")
    scale(vO, 32)
    e("  s_cbranch_scc1 L_wr")
    scale(vS, 8)
    cvtP()
    e("  s_waitcnt vmcnt(4)")
    perms(0, range(4))
    e("  v_lshlrev_b32 v%d, 2, v0" % vX)
    e("  s_waitcnt vmcnt(0)")
    if stamps: e("  s_memrealtime s[64:65]")
    pvall(["  s_nop 1"])
    if stamps:
        e("  s_memrealtime s[58:59]"); e("  s_waitcnt lgkmcnt(0)"); e("  v_writelane_b32 v%d, s64, 15" % vSt)
    e("L_wr:")
    e("  s_mov_b64 exec, s[%d:%d]" % (sMask, sMask + 1))
    e("  s_cmp_eq_u32 s%d, %d" % (sRet, 1 if warm else 2))
    for jd in range(8):
        if jd == 4: e("  s_nop 1")
        e("  ds_write_b128 v%d, v[%d:%d] offset:%d" % (vWO, vO + 4 * jd, vO + 4 * jd + 3, jd * 16))
    e("  s_mov_b64 exec, -1")
    e("  s_waitcnt lgkmcnt(0)")
    if warm:
        e("  s_cbranch_scc1 L_sum")
        e("  s_cmp_eq_u32 s%d, 2" % sRet)
    e("  s_barrier")
    e("  s_cbranch_scc1 L_end")
    e("L_sum:")
    rO = vQ
    e("  ds_read2_b32 v[%d:%d], v%d offset0:0 offset1:4" % (rO, rO + 1, vRO))
    for w in range(1, NP):
        e("  ds_read_b32 v%d, v%d offset:%d" % (rO + 2 * w, vRO, w * 2048))
        e("  ds_read_b32 v%d, v%d offset:%d" % (rO + 2 * w + 1, vRO, w * 2048 + 16))
    e("  s_waitcnt lgkmcnt(4)")
    e("  v_pk_add_f32 v[%d:%d], v[%d:%d], v[%d:%d]" % (rO, rO + 1, rO, rO + 1, rO + 2, rO + 3))
    e("  v_pk_add_f32 v[%d:%d], v[%d:%d], v[%d:%d]" % (rO, rO + 1, rO, rO + 1, rO + 4, rO + 5))
    e("  s_waitcnt lgkmcnt(0)")
    e("  v_pk_add_f32 v[%d:%d], v[%d:%d], v[%d:%d]" % (rO + 6, rO + 7, rO + 6, rO + 7, rO + 8, rO + 9))
    e("  v_pk_add_f32 v[%d:%d], v[%d:%d], v[%d:%d]" % (rO, rO + 1, rO, rO + 1, rO + 6, rO + 7))
    e("  v_cvt_pk_bf16_f32 v%d, v%d, v%d" % (rO, rO, rO + 1))
    e("  buffer_store_dword v%d, v%d, s[%d:%d], s%d offen %s" % (rO, vX, sO_, sO_ + 3, sTmp, oflags))
    if warm: e("  s_cbranch_scc1 L_help2")
    if stamps:
        e("  s_waitcnt vmcnt(0)"); e("  s_memrealtime s[52:53]"); e("  s_load_dwordx2 s[20:21], s[0:1], 64"); e("  s_mov_b32 s22, 0x100000")
        e("  s_getreg_b32 s54, hwreg(HW_REG_XCC_ID)"); e("  s_getreg_b32 s55, hwreg(HW_REG_HW_ID)"); e("  s_waitcnt lgkmcnt(0)")
        for i, sr in enumerate([50, 56, 58, 52, 54, 55, 60, 62]): e("  v_mov_b32 v%d, s%d" % (16 + i, sr))
        e("  s_mul_i32 s47, s2, %d" % W); e("  s_add_u32 s47, s47, s40"); e("  s_lshl_b32 s47, s47, 5")
        e("  v_lshlrev_b32 v12, 2, v0"); e("  s_lshl_b32 s46, s47, 3"); e("  s_add_u32 s46, s46, 0x20000")
        e("  buffer_store_dword v%d, v12, s[20:23], s46 offen" % vSt)
        e("  v_cmp_eq_u32 vcc, 0, v0"); e("  s_and_saveexec_b64 s[48:49], vcc")
        e("  buffer_store_dwordx4 v[16:19], off, s[20:23], s47"); e("  buffer_store_dwordx4 v[20:23], off, s[20:23], s47 offset:16")
    e("L_end:")
    e("  s_endpgm")
    cm("helper wave: tree token partial (m = score + mask bias, l = 1, O = v_tree)")
    e("L_helper:")
    if hdelay: e("  s_barrier", "keep out of the way while the streaming waves start up")
    e("  s_add_u32 s%d, s4, s%d" % (sQ, sIt))
    e("  s_addc_u32 s%d, s5, 0" % (sQ + 1))
    if warm:
        e("  s_mov_b32 s%d, s16" % sO_)
        e("  s_mov_b32 s%d, s17" % (sO_ + 1))
        e("  s_mov_b32 s%d, 0" % (sO_ + 2), "zero records: the dry pass below stores nothing")
        e("  s_mov_b32 s%d, 0x00020000" % (sO_ + 3))
    e("  v_mov_b32 v%d, v%d" % (vKo, vA))
    e("  v_lshlrev_b32 v%d, 6, v%d" % (vKo + 1, vY))
    lds_addrs()
    e("  s_mov_b32 s%d, %s" % (sC, f32hex(c)))
    if warm:
        for jj in range(4): e("  v_mov_b32 v%d, v%d" % (vKr + jj, vVoff))
        e("  s_mov_b32 s%d, 0x05040100" % sSelLo)
        e("  s_mov_b32 s%d, 0x07060302" % sSelHi)
        e("  s_mov_b32 s%d, 1" % sRet)
        e("  s_branch L_tail", "dry pass through the tail code (instruction cache), no global access")
    e("L_help2:")
    e("  s_mov_b32 s%d, 2" % sRet)
    if warm:
        e("  v_mov_b32 v%d, v%d" % (vA, vKo))
        for i in range(0, 16, 2): e("  v_mov_b64 v[%d:%d], 0" % (vQ + i, vQ + i + 1))
    qloads()
    e("  s_lshl_b32 s%d, s2, 8" % sTmp)
    e("  s_add_u32 s%d, s10, s%d" % (sT, sTmp))
    e("  s_addc_u32 s%d, s11, 0" % (sT + 1))
    e("  s_mov_b32 s%d, 256" % (sT + 2))
    e("  s_mov_b32 s%d, 0x00020000" % (sT + 3))
    for j in range(4):
        e("  buffer_load_dwordx4 v[%d:%d], v%d, s[%d:%d], 0 offen offset:%d" % (vT + 4 * j, vT + 4 * j + 3, vA, sT, sT + 3, j * 64))
    e("  s_add_u32 s%d, s12, s%d" % (sT, sTmp))
    e("  s_addc_u32 s%d, s13, 0" % (sT + 1))
    for r in range(4):
        e("  buffer_load_dwordx4 v[%d:%d], v%d, s[%d:%d], 0 offen offset:%d" % (vU + 4 * r, vU + 4 * r + 3, vKo + 1, sT, sT + 3, r * 16))
    e("  s_mov_b32 s%d, s14" % sT)
    e("  s_mov_b32 s%d, s15" % (sT + 1))
    e("  s_mov_b32 s%d, 64" % (sT + 2))
    e("  s_lshr_b32 s%d, s2, 3" % sTmp)
    e("  s_lshl_b32 s%d, s%d, 1" % (sTmp, sTmp))
    e("  buffer_load_ushort v%d, off, s[%d:%d], s%d" % (vNM, sT, sT + 3, sTmp), "tree_mask[b]")
    e("  v_mov_b32 v%d, %s" % (vM, f32hex(-3.0e38)))
    e("  s_waitcnt vmcnt(0)")
    for j in range(4):
        e("  v_mfma_f32_16x16x32_bf16 v[%d:%d], v[%d:%d], v[%d:%d], %s" %
          (vS, vS + 3, vT + 4 * j, vT + 4 * j + 3, vQ + 4 * j, vQ + 4 * j + 3, "0" if j == 0 else "v[%d:%d]" % (vS, vS + 3)))
    for r in range(4):
        for w in range(4):
            e("  v_lshlrev_b32 v%d, 16, v%d" % (vO + (2 * w) * 4 + r, vU + 4 * r + w))
            e("  v_and_b32 v%d, 0xffff0000, v%d" % (vO + (2 * w + 1) * 4 + r, vU + 4 * r + w))
    e("  v_lshlrev_b32 v%d, 16, v%d" % (vNM, vNM))
    e("  v_sub_f32 v%d, 1.0, v%d" % (vNM, vNM))
    e("  v_mul_f32 v%d, %s, v%d" % (vNM, f32hex(-1.0e9 * math.log2(math.e)), vNM), "(1-mask) * -1e9, log2 units")
    e("  v_fma_f32 v%d, v%d, s%d, v%d" % (vX, vS, sC, vNM))
    e("  v_cmp_gt_u32 vcc, 16, v0")
    e("  v_mov_b32 v%d, 1.0" % vLa)
    e("  s_nop 0")
    e("  v_cndmask_b32 v%d, v%d, v%d, vcc" % (vM, vM, vX))
    xmax(vM, vX)
    e("  s_branch L_xchg")
    L.append('.section .rodata,"a"'); L.append(".p2align 6"); L.append(".amdhsa_kernel %s" % KNAME)
    L.append("  .amdhsa_next_free_vgpr %d" % nv); L.append("  .amdhsa_next_free_sgpr %d" % (96 if ga else 80)); L.append("  .amdhsa_accum_offset %d" % ((nv + 3) // 4 * 4))
    L.append("  .amdhsa_group_segment_fixed_size 0"); L.append("  .amdhsa_kernarg_size 72"); L.append("  .amdhsa_user_sgpr_count 2")
    L.append("  .amdhsa_user_sgpr_kernarg_segment_ptr 1"); L.append("  .amdhsa_system_sgpr_workgroup_id_x 1"); L.append(".end_amdhsa_kernel")
    out = []
    i = 0
    while i < len(L):
        if (i + 3 < len(L) and L[i].strip().startswith("s_waitcnt vmcnt") and " m0," in L[i + 1]
                and L[i + 2].strip() == "s_nop 0" and L[i + 3].rstrip().endswith(" lds")):
            out += [L[i + 1], L[i], L[i + 3]]
            i += 4
        else:
            out.append(L[i]); i += 1
    return "\n".join(out) + "\n"
```

```python
import math, struct
from gen1 import KNAME, HEADER, f32hex

def gen(G=256, stamps=False, oflags="sc1", warm=False, lds_pad=90000, tau4=870, c0=1, gsh=6, wmid=20, wmin=16, wmax=32,
        gb=(10, 11), jb=(8, 9), wb=(13, 18), tbit=12, wx=((12, "w", 1), (17, "b", 0)), D1=5, boost=1, Dt=8, kflags="nt", vflags="nt",
        doc="", hdelay=0, L0=None, lk=2, fixed=None, peel2=False, x4=0, w0=None, ga=None, g2=None, fast=1):
    W, DP, NP, NST = 4, 8, 5, 16
    L = []
    def e(x, c=None): L.append(x + (("%s; %s" % (" " * max(1, 66 - len(x)), c)) if c else ""))
    def cm(c): L.append("  ; " + c)
    mlbase = NP * 2048
    ldsK = (mlbase + NP * 32 + 256 + 1023) // 1024 * 1024
    lds = max(ldsK + W * 8192, lds_pad)
    vKo = 1; vVoff = 5; vX, vY, vM, vNM = 6, 7, 8, 9; vA = 10
    vWO, vWM, vRO, vRM = 12, 13, 14, 15
    vQ = 16; vO = 32; vLa = 64; vOne = 68; vT = 72; vS = 104; vP = 112; vKr = 116; vSt = 120
    vK = 124; vV = [140, 156]; nv = 172
    vU = vT + 16
    sK, sV, sQ, sO_, sT = 20, 24, 28, 32, 36
    sW, sIt, sC, sSelLo, sSelHi, sTmp = 40, 43, 44, 45, 46, 47
    sOf = [[41, 42], [48, 49]]
    sMask = 52
    sM0 = [66, 67]
    sTm = 68
    sRet, sMode, sRef, sL, sL2, sRaw, sXor = 72, 74, 75, 76, 77, 78, 79
    c = math.log2(math.e) / math.sqrt(128.0)
    rest = [b for b in range(8, 19) if b not in gb and b not in jb and b not in wb and b != tbit]
    assert len(rest) == 4
    tb = 1 << tbit
    smask = sum(1 << b for b in rest)
    contiguous = rest == list(range(rest[0], rest[0] + 4))
    def dep(v, bits): return sum(((v >> i) & 1) << b for i, b in enumerate(bits))
    assert dep(3, jb) < 4096

    def loadK(ds, t, jj):
        if jj: e("  s_add_u32 m0, s%d, %d" % (sM0[t], jj * 1024))
        else: e("  s_mov_b32 m0, s%d" % sM0[t])
        e("  s_nop 0")
        e("  buffer_load_dwordx4 v%d, s[%d:%d], s%d offen %s lds" % (vKo + jj, sK, sK + 3, sOf[ds][t], kflags))
    def loadV(ds, t, jj):
        r = vV[t] + jj * 4
        e("  buffer_load_dwordx4 v[%d:%d], v%d, s[%d:%d], s%d offen offset:%d %s" % (r, r + 3, vVoff, sV, sV + 3, sOf[ds][t], dep(jj, jb), vflags))
    def load(m):
        ds, q, jj = m // 16, (m % 16) // 4, m % 4
        (loadV if q & 1 else loadK)(ds, q // 2, jj)
    def nextraw():
        if contiguous:
            e("  s_add_u32 s%d, s%d, %d" % (sRaw, sRaw, 1 << rest[0]))
        else:
            e("  s_or_b32 s%d, s%d, 0x%x" % (sRaw, sRaw, (~smask) & 0x7ffff & ~((1 << rest[0]) - 1)))
            e("  s_add_u32 s%d, s%d, %d" % (sRaw, sRaw, 1 << rest[0]))
            e("  s_and_b32 s%d, s%d, 0x%x" % (sRaw, sRaw, smask))
        e("  s_xor_b32 s%d, s%d, s%d" % (sOf[1][0], sRaw, sXor), "offset of the next stage's tile 0")
        e("  s_xor_b32 s%d, s%d, %d" % (sOf[1][1], sOf[1][0], tb), "                         tile 1")
    def qloads():
        e("  s_mov_b64 exec, s[%d:%d]" % (sMask, sMask + 1))
        for j in range(4):
            e("  buffer_load_dwordx4 v[%d:%d], v%d, s[%d:%d], 0 offen offset:%d" % (vQ + 4 * j, vQ + 4 * j + 3, vA, sQ, sQ + 3, j * 64))
        e("  s_mov_b64 exec, -1")
    def lds_addrs():
        e("  v_lshl_add_u32 v%d, v%d, 2, v%d" % (vWO, vX, vY))
        e("  v_lshlrev_b32 v%d, 7, v%d" % (vWO, vWO))
        e("  s_lshl_b32 s%d, s%d, 11" % (sTmp, sW))
        e("  v_add_u32 v%d, s%d, v%d" % (vWO, sTmp, vWO), "O partial write: w*2048 + (h*4+g)*128")
        e("  v_lshlrev_b32 v%d, 3, v%d" % (vRM, vX), "(m,l) read: h*8")
        e("  s_lshl_b32 s%d, s%d, 5" % (sTmp, sW))
        e("  v_add_u32 v%d, s%d, v%d" % (vWM, sTmp, vRM), "(m,l) write: w*32 + h*8")
        e("  v_lshlrev_b32 v%d, 7, v%d" % (vRO, vY))
        e("  v_and_b32 v%d, 3, v0" % vM)
        e("  v_lshl_add_u32 v%d, v%d, 5, v%d" % (vRO, vM, vRO))
        e("  v_bfe_u32 v%d, v0, 2, 2" % vM)
        e("  v_lshl_add_u32 v%d, v%d, 2, v%d" % (vRO, vM, vRO))
        e("  s_and_b32 s%d, s%d, 3" % (sTmp, sW))
        e("  s_lshl_b32 s%d, s%d, 9" % (sTmp, sTmp))
        e("  v_add_u32 v%d, s%d, v%d" % (vRO, sTmp, vRO), "O read: head*512 + g*128 + (e&3)*32 + r*4")
    def waits(q):
        if fixed:
            def verf(Ds, last=False):
                for n in range(4 * q, 4 * q + 4):
                    e("  s_waitcnt vmcnt(%d)" % (Ds[n % len(Ds)] - 1))
                    if last: loadK(1, 1, n % 4)
                    else: load(n + DP)
            if q == 3:
                e("  s_cmp_eq_u32 s%d, %d" % (sIt, NST - 2))
                e("  s_cbranch_scc1 L_g3_last")
            if boost:
                e("  s_cmp_ge_u32 s%d, %d" % (sIt, NST - 1 - boost + (1 if q < 2 else 0)))
                e("  s_cbranch_scc1 L_g%d_hi" % q)
            verf(fixed)
            if boost:
                e("  s_branch L_join%d" % q)
                e("L_g%d_hi:" % q)
                verf([Dt])
            if q == 3:
                e("  s_branch L_join3")
                e("L_g3_last:")
                verf([Dt], last=True)
            e("L_join%d:" % q)
            return
        off = (0, 2, 1, 3)[(q + 2) % 4]
        dlo, dhi = wmin // 4, DP
        order = sorted(range(dlo, dhi + 1), key=lambda d: abs(4 * d + 1 - wmid))
        def ver(D, last=False):
            for n in range(4 * q, 4 * q + 4):
                e("  s_waitcnt vmcnt(%d)" % (D - 1))
                if last: loadK(1, 1, n % 4)
                else: load(n + DP)
        if q == 3:
            e("  s_cmp_eq_u32 s%d, %d" % (sIt, NST - 2))
            e("  s_cbranch_scc1 L_g3_last")
        e("  s_add_u32 s%d, s%d, %d" % (sL, sMode, off))
        e("  s_lshr_b32 s%d, s%d, 2" % (sL, sL))
        e("  s_min_u32 s%d, s%d, %d" % (sL, sL, dhi), "window depth of this group")
        for d in order[1:]:
            e("  s_cmp_eq_u32 s%d, %d" % (sL, d))
            e("  s_cbranch_scc1 L_g%d_d%d" % (q, d))
        ver(order[0])
        for d in order[1:]:
            e("  s_branch L_join%d" % q)
            e("L_g%d_d%d:" % (q, d))
            ver(d)
        if q == 3:
            e("  s_branch L_join3")
            e("L_g3_last:")
            ver(Dt, last=True)
        e("L_join%d:" % q)
    def setmode():
        e("  s_waitcnt lgkmcnt(0)")
        e("  s_lshl_b32 s%d, s%d, 2" % (sL, sTm))
        e("  s_cmp_le_u32 s%d, %d" % (sIt, c0))
        if x4:
            e("  s_sub_u32 s%d, s%d, s73" % (sL2, sL))
            e("  s_cselect_b32 s%d, s%d, s%d" % (sL2, sL2, sL2))
            e("  s_cmp_le_u32 s%d, %d" % (sIt, c0))
            e("  s_cselect_b32 s%d, s%d, s%d" % (sRef, sL2, sRef))
        else:
            e("  s_cselect_b32 s%d, s%d, s%d" % (sRef, sL, sRef), "line starts at this wave's own early progress")
        if ga:
            c1, margin, clampv = ga
            def publish(tag, at, off, save):
                e("  s_cmp_eq_u32 s%d, %d" % (sIt, at))
                e("  s_cbranch_scc0 L_nopub%s" % tag)
                e("  s_mov_b32 s%d, s%d" % (save, sL))
                e("  s_cmp_eq_u32 s89, 0")
                e("  s_cbranch_scc0 L_nopub%s" % tag)
                e("  v_mov_b32 v%d, s%d" % (vSt + 1, sL))
                e("  s_mov_b64 exec, 1")
                e("  buffer_store_dword v%d, off, s[%d:%d], s90 offset:%d sc1" % (vSt + 1, sT, sT + 3, off), "sample wave: publish progress hint")
                e("  s_mov_b64 exec, -1")
                e("L_nopub%s:" % tag)
            def mean8(tag, at, own):
                e("  s_cmp_eq_u32 s%d, %d" % (sIt, at))
                e("  s_cbranch_scc0 L_noad%s" % tag)
                e("  s_min_u32 s91, s80, s81")
                for i in range(2, 8): e("  s_min_u32 s91, s91, s%d" % (80 + i))
                e("  s_cmp_eq_u32 s91, 0")
                e("  s_cbranch_scc1 L_noad%s" % tag)
                e("  s_sub_i32 s91, s80, s%d" % own)
                for i in range(1, 8):
                    e("  s_sub_i32 s%d, s%d, s%d" % (80 + i, 80 + i, own))
                    e("  s_add_i32 s91, s91, s%d" % (80 + i))
                e("  s_ashr_i32 s91, s91, 3")
            publish("A", c0, 0, 88)
            mean8("A", c1, 88)
            e("  s_add_u32 s93, s88, s91", "mean time of the first checkpoint")
            e("  s_sub_i32 s91, s91, %d" % margin)
            e("  s_min_i32 s91, s91, %d" % clampv)
            e("  s_max_i32 s91, s91, %d" % -clampv)
            e("  s_add_u32 s%d, s%d, s91" % (sRef, sRef))
            e("L_noadA:")
            if g2:
                p2, r2, delta, margin2 = g2
                sh = int(math.log2(p2 - c0)); assert 1 << sh == p2 - c0
                publish("B", p2, 128, 92)
                mean8("B", r2, 92)
                e("  s_min_i32 s91, s91, 600")
                e("  s_max_i32 s91, s91, -600")
                e("  s_add_u32 s91, s92, s91", "mean time of the second checkpoint")
                e("  s_cmp_eq_u32 s93, 0")
                e("  s_cbranch_scc1 L_noadB")
                e("  s_sub_i32 s94, s91, s93")
                e("  s_ashr_i32 s94, s94, %d" % sh)
                e("  s_sub_i32 s94, s94, %d" % delta)
                e("  s_max_i32 s94, s94, %d" % tau4)
                e("  s_min_i32 s94, s94, %d" % (tau4 + 120), "measured stage time")
                e("  s_mul_i32 s%d, s94, %d" % (sRef, r2 - p2))
                e("  s_add_u32 s%d, s%d, s91" % (sRef, sRef))
                e("  s_sub_u32 s%d, s%d, %d" % (sRef, sRef, margin2))
                e("L_noadB:")
        e("  s_sub_i32 s%d, s%d, s%d" % (sL2, sL, sRef), "lag behind the progress line")
        if g2: e("  s_add_u32 s%d, s%d, s94" % (sRef, sRef))
        else: e("  s_add_u32 s%d, s%d, %d" % (sRef, sRef, tau4))
        if L0 is not None:
            e("  s_sub_i32 s%d, s%d, %d" % (sL, sL2, L0))
            e("  s_max_i32 s%d, s%d, 0" % (sL, sL))
            e("  s_lshr_b32 s%d, s%d, %d" % (sL, sL, lk))
            e("  s_add_u32 s%d, s%d, s%d" % (sRef, sRef, sL), "memory slower than the schedule: let the schedule slip")
        e("  s_add_i32 s%d, s%d, %d" % (sL2, sL2, (1 << (gsh - 1)) + (wmid << gsh)))
        e("  s_ashr_i32 s%d, s%d, %d" % (sL2, sL2, gsh))
        e("  s_min_i32 s%d, s%d, %d" % (sL2, sL2, wmax))
        e("  s_max_i32 s%d, s%d, %d" % (sMode, sL2, wmin), "window in quarter loads")
        if boost:
            e("  s_cmp_ge_u32 s%d, %d" % (sIt, NST - 1 - boost))
            e("  s_cselect_b32 s%d, %d, s%d" % (sMode, 4 * Dt, sMode))
    def qk(t):
        d = vS + 4 * t
        for jj in range(4):
            e("  ds_read_b128 v[%d:%d], v%d offset:%d" % (vK + 4 * jj, vK + 4 * jj + 3, vKr + jj, t * 4096))
        for j in range(4):
            e("  s_waitcnt lgkmcnt(%d)" % (3 - j))
            e("  v_mfma_f32_16x16x32_bf16 v[%d:%d], v[%d:%d], v[%d:%d], %s" %
              (d, d + 3, vK + 4 * j, vK + 4 * j + 3, vQ + 4 * j, vQ + 4 * j + 3, "0" if j == 0 else "v[%d:%d]" % (d, d + 3)))
    def perms(t, ws):
        for w in ws:
            for hh, sel in ((0, sSelLo), (1, sSelHi)):
                for u in range(2):
                    e("  v_perm_b32 v%d, v%d, v%d, s%d" % (vT + (2 * w + hh) * 4 + 2 * t + u, vV[t] + (2 * u + 1) * 4 + w, vV[t] + (2 * u) * 4 + w, sel))
    def pv(jd):
        o = vO + jd * 4
        e("  v_mfma_f32_16x16x32_bf16 v[%d:%d], v[%d:%d], v[%d:%d], v[%d:%d]" % (o, o + 3, vT + 4 * jd, vT + 4 * jd + 3, vP, vP + 3, o, o + 3))
    def pvall(fill):
        perms(1, [0]); perms(1, [1]); pv(0); pv(1); perms(1, [2]); pv(2); pv(3); perms(1, [3]); pv(4); pv(5)
        for x in fill: e(x)
        pv(6); pv(7)
    def lsum():
        e("  v_mfma_f32_16x16x32_bf16 v[%d:%d], v[%d:%d], v[%d:%d], v[%d:%d]" % (vLa, vLa + 3, vOne, vOne + 3, vP, vP + 3, vLa, vLa + 3), "l += sum_k P")
    def xmax(a, t):
        e("  v_mov_b32 v%d, v%d" % (t, a)); e("  s_nop 1")
        e("  v_permlane32_swap_b32 v%d, v%d" % (a, t)); e("  s_nop 1")
        e("  v_max_f32 v%d, v%d, v%d" % (a, a, t))
        e("  v_mov_b32 v%d, v%d" % (t, a)); e("  s_nop 1")
        e("  v_permlane16_swap_b32 v%d, v%d" % (a, t)); e("  s_nop 1")
        e("  v_max_f32 v%d, v%d, v%d" % (a, a, t))
    def scale(r0, n):
        for i in range(n // 2):
            e("  v_pk_mul_f32 v[%d:%d], v[%d:%d], v[%d:%d] op_sel_hi:[1,0]" % (r0 + 2 * i, r0 + 2 * i + 1, r0 + 2 * i, r0 + 2 * i + 1, vA, vA + 1))
    def cvtP():
        for u in range(4):
            e("  v_cvt_pk_bf16_f32 v%d, v%d, v%d" % (vP + u, vS + 2 * u, vS + 2 * u + 1))
    def softmax(tag):
        e("  s_nop 7")
        e("  v_max3_f32 v%d, v%d, v%d, v%d" % (vX, vS, vS + 1, vS + 2))
        e("  v_max3_f32 v%d, v%d, v%d, v%d" % (vY, vS + 3, vS + 4, vS + 5))
        e("  v_max3_f32 v%d, v%d, v%d, v%d" % (vX, vX, vS + 6, vS + 7))
        e("  v_max_f32 v%d, v%d, v%d" % (vX, vX, vY))
        xmax(vX, vY)
        e("  v_mul_f32 v%d, s%d, v%d" % (vX, sC, vX), "stage max, log2 units")
        e("  v_cmp_gt_f32 vcc, v%d, v%d" % (vX, vM))
        e("  s_and_b64 vcc, vcc, s[%d:%d]" % (sMask, sMask + 1))
        e("  s_cbranch_scc0 L_nors%s" % tag, "running max unchanged: factor would be exactly 1")
        e("  v_max_f32 v%d, v%d, v%d" % (vX, vX, vM))
        e("  v_sub_f32 v%d, v%d, v%d" % (vA, vM, vX))
        e("  v_exp_f32 v%d, v%d" % (vA, vA))
        e("  v_mov_b32 v%d, v%d" % (vM, vX))
        e("  v_mul_f32 v%d, v%d, v%d" % (vLa, vLa, vA))
        scale(vO, 32)
        e("L_nors%s:" % tag)
        for i in range(8): e("  v_fma_f32 v%d, v%d, s%d, -v%d" % (vS + i, vS + i, sC, vM))
        for i in range(8): e("  v_exp_f32 v%d, v%d" % (vS + i, vS + i))
        e("  s_nop 0")
        cvtP()

    L.append(HEADER.rstrip("\n"))
    L.append("; @launch grid=(%d,1,1) block=(%d,1,1) lds=%d" % (G, NP * 64, lds))
    if doc: L.append(doc.rstrip("\n"))
    L.append('.amdgcn_target "amdgcn-amd-amdhsa--gfx950"')
    L.append(".text"); L.append(".globl %s" % KNAME); L.append(".p2align 8"); L.append(".type %s,@function" % KNAME); L.append("%s:" % KNAME)
    e("  s_load_dwordx16 s[4:19], s[0:1], 0", "q k v k_tree v_tree mask out debug")
    if stamps: e("  s_memrealtime s[50:51]")
    e("  s_cmp_ge_u32 s2, 256")
    e("  s_cbranch_scc1 L_end", "extra workgroups")
    e("  s_and_b32 s3, s2, 7")
    e("  s_lshr_b32 s2, s2, 3")
    e("  s_lshl_b32 s3, s3, 5")
    e("  s_or_b32 s2, s2, s3", "bh = (id&7)*32 + (id>>3)  (b*8 + kv head)")
    e("  v_lshrrev_b32 v%d, 6, v0" % vX)
    e("  v_and_b32 v0, 63, v0", "lane")
    e("  v_readfirstlane_b32 s%d, v%d" % (sW, vX), "wave")
    e("  v_lshrrev_b32 v%d, 4, v0" % vY, "g = lane>>4")
    e("  v_and_b32 v%d, 15, v0" % vX, "c = lane&15")
    e("  v_lshlrev_b32 v%d, 4, v%d" % (vVoff, vX))
    if gb[1] == gb[0] + 1:
        e("  v_lshl_add_u32 v%d, v%d, %d, v%d" % (vVoff, vY, gb[0], vVoff), "V lane offset = row(g) + c*16")
    else:
        e("  v_and_b32 v%d, 1, v%d" % (vM, vY)); e("  v_lshl_add_u32 v%d, v%d, %d, v%d" % (vVoff, vM, gb[0], vVoff))
        e("  v_lshrrev_b32 v%d, 1, v%d" % (vM, vY)); e("  v_lshl_add_u32 v%d, v%d, %d, v%d" % (vVoff, vM, gb[1], vVoff))
    def kprep():
        e("  v_lshlrev_b32 v%d, 6, v%d" % (vM, vY))
        e("  v_xor_b32 v%d, v%d, v%d" % (vKo, vVoff, vM), "K lane offsets: 16-B chunk xor-swizzled by 4g+j")
        for j in range(1, 4): e("  v_xor_b32 v%d, %d, v%d" % (vKo + j, j * 16 + dep(j, jb), vKo))
        e("  s_lshl_b32 s%d, s%d, 13" % (sM0[0], sW))
        e("  s_add_u32 s%d, s%d, %d" % (sM0[0], sM0[0], ldsK))
        e("  s_add_u32 s%d, s%d, 4096" % (sM0[1], sM0[0]), "LDS slots of this wave's two K tiles")
        e("  s_mov_b32 s%d, 0x00020000" % (sK + 3))
        e("  s_mov_b32 s%d, 0x80000" % (sK + 2))
    def qprep():
        e("  v_lshlrev_b32 v%d, 8, v%d" % (vNM, vX))
        e("  v_lshl_add_u32 v%d, v%d, 4, v%d" % (vA, vY, vNM), "Q lane offset = head*256 + g*16")
        e("  v_cmp_gt_u32 s[%d:%d], 4, v%d" % (sMask, sMask + 1, vX), "lanes of the 4 real head columns")
        e("  s_lshl_b32 s%d, s2, 10" % sIt)
        e("  s_mov_b32 s%d, 1024" % (sQ + 2))
        e("  s_mov_b32 s%d, 0x00020000" % (sQ + 3))
        for i in range(0, 16, 2): e("  v_mov_b64 v[%d:%d], 0" % (vQ + i, vQ + i + 1))
    m0 = (1 << wb[0]) ^ sum(1 << b for b, src, i in wx if (src, i) == ("w", 0))
    m1 = (1 << wb[1]) ^ sum(1 << b for b, src, i in wx if (src, i) == ("w", 1))
    e("  s_lshl_b32 s%d, s2, 19" % sTmp)
    e("  s_and_b32 s%d, s%d, 1" % (sXor, sW))
    e("  s_mul_i32 s%d, s%d, 0x%x" % (sXor, sXor, m0))
    e("  s_lshr_b32 s%d, s%d, 1" % (sL, sW))
    e("  s_mul_i32 s%d, s%d, 0x%x" % (sL, sL, m1))
    e("  s_xor_b32 s%d, s%d, s%d" % (sOf[0][0], sXor, sL))
    for b, src, i in wx:
        if src == "b":
            e("  s_bfe_u32 s%d, s2, 0x%x" % (sL2, 0x10000 | i))
            e("  s_lshl_b32 s%d, s%d, %d" % (sL2, sL2, b))
            e("  s_xor_b32 s%d, s%d, s%d" % (sOf[0][0], sOf[0][0], sL2), "stage 0, tile 0 / per-wave address phase")
    e("  s_mov_b32 s%d, 0x00020000" % (sV + 3))
    e("  s_mov_b32 s%d, 0x80000" % (sV + 2))
    if not fast:
        kprep(); qprep()
    elif fast == 2:
        kprep()
    e("  s_cmp_eq_u32 s%d, %d" % (sW, W))
    e("  s_waitcnt lgkmcnt(0)")
    e("  s_cbranch_scc1 L_helper")
    if stamps: e("  s_memrealtime s[60:61]")
    e("  s_add_u32 s%d, s8, s%d" % (sV, sTmp))
    e("  s_addc_u32 s%d, s9, 0" % (sV + 1))
    for jj in range(4): loadV(0, 0, jj)
    if fast == 1: kprep()
    e("  s_add_u32 s%d, s6, s%d" % (sK, sTmp))
    e("  s_addc_u32 s%d, s7, 0" % (sK + 1))
    for jj in range(4): loadK(0, 0, jj)
    if fast: qprep()
    e("  s_add_u32 s%d, s4, s%d" % (sQ, sIt))
    e("  s_addc_u32 s%d, s5, 0" % (sQ + 1))
    qloads()
    e("  s_mov_b32 s%d, s%d" % (sXor, sOf[0][0]))
    e("  s_xor_b32 s%d, s%d, %d" % (sOf[0][1], sXor, tb), "stage 0, tile 1")
    e("  s_add_u32 s%d, s16, s%d" % (sO_, sIt))
    e("  s_addc_u32 s%d, s17, 0" % (sO_ + 1))
    e("  s_mov_b32 s%d, 1024" % (sO_ + 2))
    e("  s_mov_b32 s%d, 0x00020000" % (sO_ + 3))
    e("  s_mov_b32 s%d, 0" % sRaw)
    nextraw()
    e("  s_mov_b32 s%d, %s" % (sC, f32hex(c)), "log2(e)/sqrt(128)")
    e("  s_mov_b32 s%d, 0x05040100" % sSelLo)
    e("  s_mov_b32 s%d, 0x07060302" % sSelHi)
    e("  s_mov_b32 s%d, 0" % sIt)
    e("  s_mov_b32 s%d, 0" % sRet)
    if ga:
        e("  s_and_b32 s89, s2, 31")
        e("  s_or_b32 s89, s89, s%d" % sW)
        e("  s_lshr_b32 s90, s2, 3")
        e("  s_and_b32 s90, s90, 28")
        e("  s_mov_b32 s%d, s18" % sT); e("  s_mov_b32 s%d, s19" % (sT + 1)); e("  s_mov_b32 s%d, 256" % (sT + 2)); e("  s_mov_b32 s93, 0"); e("  s_mov_b32 s94, %d" % tau4); e("  s_mov_b32 s%d, 0x00020000" % (sT + 3))
    e("  s_mov_b32 s%d, %d" % (sMode, w0 if w0 else wmid))
    if x4:
        e("  s_cmp_eq_u32 s3, 128")
        e("  s_cselect_b32 s73, %d, 0" % x4)
    e("  v_xor_b32 v%d, v%d, v%d" % (vKr, vX, vY))
    e("  v_lshlrev_b32 v%d, 4, v%d" % (vKr, vKr))
    e("  v_and_b32 v%d, 3, v0" % vWO)
    e("  v_lshl_add_u32 v%d, v%d, 10, v%d" % (vKr, vWO, vKr))
    e("  v_bfe_u32 v%d, v0, 2, 2" % vWO)
    e("  v_lshl_add_u32 v%d, v%d, 8, v%d" % (vKr, vWO, vKr))
    e("  v_add_u32 v%d, s%d, v%d" % (vKr, sM0[0], vKr), "K fragment read addresses (A operand)")
    for jj in range(1, 4): e("  v_xor_b32 v%d, %d, v%d" % (vKr + jj, jj * 64, vKr))
    lds_addrs()
    e("  v_mov_b32 v%d, %s" % (vM, f32hex(-3.0e38)), "running max")
    for i in range(4): e("  v_mov_b32 v%d, 0x3f803f80" % (vOne + i))
    for i in range(0, 36, 2): e("  v_mov_b64 v[%d:%d], 0" % (vO + i, vO + i + 1))
    if stamps: e("  s_memrealtime s[62:63]")
    cm("first group: V0, K0, Q were issued in that order")
    for n in range(8 if peel2 else 4):
        e("  s_waitcnt vmcnt(%d)" % (D1 - 1 + (4 if n < D1 - 1 else 0)))
        if stamps and n == 0: e("  s_memrealtime s[56:57]")
        load(n + DP)
    e("  s_waitcnt vmcnt(%d)" % (8 if peel2 else 4))
    if stamps: e("  s_waitcnt lgkmcnt(0)")
    if hdelay == 1: e("  s_barrier", "releases the helper wave")
    e("  s_branch L_mid")

    cm("---- stage loop: groups of 4 loads land in the order K0 V0 K1 V1; each landing load lets one new load go")
    e("L_loop:")
    cm("K0 lands; issue K1")
    waits(0)
    e("L_mid:")
    cm("S0 = K0.Q^T")
    qk(0)
    if not fixed: e("  s_memrealtime s[%d:%d]" % (sTm, sTm + 1), "progress sample for the prefetch-depth choice below (never waited for as a delay)")
    if ga:
        e("  s_cmp_eq_u32 s%d, %d" % (sIt, ga[0]))
        e("  s_cbranch_scc0 L_nold")
        e("  s_load_dwordx8 s[80:87], s[18:19], 0")
        e("L_nold:")
        if g2:
            e("  s_cmp_eq_u32 s%d, %d" % (sIt, g2[1]))
            e("  s_cbranch_scc0 L_nold2")
            e("  s_load_dwordx8 s[80:87], s[18:19], 128")
            e("L_nold2:")
    if peel2:
        e("  s_cmp_eq_u32 s%d, 0" % sIt)
        e("  s_cbranch_scc1 L_join1", "stage 0: these loads were issued in the prologue")
    cm("V0 lands; issue V1")
    waits(1)
    cm("transpose V0 (keys into the MFMA k dimension)")
    perms(0, range(4))
    if not fixed:
        cm("choose how many loads may stay outstanding during the next stage")
        setmode()
    cm("K1 lands; issue next K0")
    waits(2)
    cm("S1 = K1.Q^T, online softmax over the 32 keys")
    qk(1)
    softmax("")
    cm("V1 lands; issue next V0 (last-but-one stage: the last K1)")
    waits(3)
    if stamps: e("  s_memrealtime s[64:65]")
    lsum()
    pvall(["  s_mov_b32 s%d, s%d" % (sOf[0][0], sOf[1][0]), "  s_mov_b32 s%d, s%d" % (sOf[0][1], sOf[1][1])])
    nextraw()
    if stamps:
        e("  s_mov_b32 m0, s%d" % sIt); e("  s_waitcnt lgkmcnt(0)"); e("  v_writelane_b32 v%d, s64, m0" % vSt)
    if hdelay == 2:
        e("  s_cmp_eq_u32 s%d, 2" % sIt)
        e("  s_cbranch_scc0 L_nb")
        e("  s_barrier", "releases the helper wave")
        e("L_nb:")
    e("  s_add_u32 s%d, s%d, 1" % (sIt, sIt))
    e("  s_cmp_lt_u32 s%d, %d" % (sIt, NST - 1))
    e("  s_cbranch_scc1 L_loop")
    cm("last stage: K0, K1 are in flight; V0, V1 follow as they land")
    for jj in range(4):
        e("  s_waitcnt vmcnt(%d)" % (Dt - 1)); loadV(0, 0, jj)
    e("L_tail:")
    qk(0)
    if warm:
        e("  s_cmp_eq_u32 s%d, 1" % sRet)
        e("  s_cbranch_scc1 L_tail2")
    for jj in range(4):
        e("  s_waitcnt vmcnt(%d)" % (Dt - 1)); loadV(0, 1, jj)
    e("L_tail2:")
    qk(1)
    softmax("T")
    if warm:
        e("  s_cmp_eq_u32 s%d, 1" % sRet)
        e("  s_nop 0")
        lsum()
        e("  s_cbranch_scc1 L_w2")
        e("  s_nop 5")
    else:
        e("  s_nop 1")
        lsum()
        e("  s_nop 6")
    cm("exchange (m, l) of the 5 partials, turn them into this wave's final weight exp2(m - M) / L")
    e("L_xchg:")
    e("  s_mov_b64 exec, s[%d:%d]" % (sMask, sMask + 1))
    e("  v_mov_b32 v%d, v%d" % (vA, vM))
    e("  v_mov_b32 v%d, v%d" % (vA + 1, vLa))
    e("  ds_write_b64 v%d, v[%d:%d] offset:%d" % (vWM, vA, vA + 1, mlbase))
    e("  s_mov_b64 exec, -1")
    e("  s_waitcnt lgkmcnt(0)")
    e("  s_barrier")
    e("L_w2:")
    rML = vQ
    for w in range(NP):
        e("  ds_read_b64 v[%d:%d], v%d offset:%d" % (rML + 2 * w, rML + 2 * w + 1, vRM, mlbase + w * 32))
    e("  s_lshl_b32 s%d, s%d, 8" % (sTmp, sW))
    e("  s_waitcnt lgkmcnt(0)")
    e("  v_max3_f32 v%d, v%d, v%d, v%d" % (vX, rML, rML + 2, rML + 4))
    e("  v_max3_f32 v%d, v%d, v%d, v%d" % (vX, vX, rML + 6, rML + 8), "global max")
    e("  v_sub_f32 v%d, v%d, v%d" % (vA, vM, vX))
    for w in range(NP): e("  v_sub_f32 v%d, v%d, v%d" % (rML + 2 * w, rML + 2 * w, vX))
    e("  v_exp_f32 v%d, v%d" % (vA, vA))
    for w in range(NP): e("  v_exp_f32 v%d, v%d" % (rML + 2 * w, rML + 2 * w))
    e("  s_nop 0")
    e("  v_mul_f32 v%d, v%d, v%d" % (vY, rML, rML + 1))
    for w in range(1, NP): e("  v_fmac_f32 v%d, v%d, v%d" % (vY, rML + 2 * w, rML + 2 * w + 1))
    e("  v_rcp_f32 v%d, v%d" % (vY, vY), "1 / global sum")
    e("  s_cmp_eq_u32 s%d, 2" % sRet)
    e("  v_mul_f32 v%d, v%d, v%d" % (vA, vA, vY), "this wave's final weight")
    scale(vO, 32)
    e("  s_cbranch_scc1 L_wr")
    scale(vS, 8)
    cvtP()
    e("  s_waitcnt vmcnt(4)")
    perms(0, range(4))
    e("  v_lshlrev_b32 v%d, 2, v0" % vX)
    e("  s_waitcnt vmcnt(0)")
    if stamps: e("  s_memrealtime s[64:65]")
    pvall(["  s_nop 1"])
    if stamps:
        e("  s_memrealtime s[58:59]"); e("  s_waitcnt lgkmcnt(0)"); e("  v_writelane_b32 v%d, s64, 15" % vSt)
    cm("weighted O partials -> LDS, sum, bf16, store")
    e("L_wr:")
    e("  s_mov_b64 exec, s[%d:%d]" % (sMask, sMask + 1))
    e("  s_cmp_eq_u32 s%d, %d" % (sRet, 1 if warm else 2))
    for jd in range(8):
        if jd == 4: e("  s_nop 1")
        e("  ds_write_b128 v%d, v[%d:%d] offset:%d" % (vWO, vO + 4 * jd, vO + 4 * jd + 3, jd * 16))
    e("  s_mov_b64 exec, -1")
    e("  s_waitcnt lgkmcnt(0)")
    if warm:
        e("  s_cbranch_scc1 L_sum")
        e("  s_cmp_eq_u32 s%d, 2" % sRet)
    e("  s_barrier")
    e("  s_cbranch_scc1 L_end")
    e("L_sum:")
    rO = vQ
    e("  ds_read2_b32 v[%d:%d], v%d offset0:0 offset1:4" % (rO, rO + 1, vRO))
    for w in range(1, NP):
        e("  ds_read_b32 v%d, v%d offset:%d" % (rO + 2 * w, vRO, w * 2048))
        e("  ds_read_b32 v%d, v%d offset:%d" % (rO + 2 * w + 1, vRO, w * 2048 + 16))
    e("  s_waitcnt lgkmcnt(4)")
    e("  v_pk_add_f32 v[%d:%d], v[%d:%d], v[%d:%d]" % (rO, rO + 1, rO, rO + 1, rO + 2, rO + 3))
    e("  v_pk_add_f32 v[%d:%d], v[%d:%d], v[%d:%d]" % (rO, rO + 1, rO, rO + 1, rO + 4, rO + 5))
    e("  s_waitcnt lgkmcnt(0)")
    e("  v_pk_add_f32 v[%d:%d], v[%d:%d], v[%d:%d]" % (rO + 6, rO + 7, rO + 6, rO + 7, rO + 8, rO + 9))
    e("  v_pk_add_f32 v[%d:%d], v[%d:%d], v[%d:%d]" % (rO, rO + 1, rO, rO + 1, rO + 6, rO + 7))
    e("  v_cvt_pk_bf16_f32 v%d, v%d, v%d" % (rO, rO, rO + 1))
    e("  buffer_store_dword v%d, v%d, s[%d:%d], s%d offen %s" % (rO, vX, sO_, sO_ + 3, sTmp, oflags))
    if warm: e("  s_cbranch_scc1 L_help2")
    if stamps:
        e("  s_waitcnt vmcnt(0)"); e("  s_memrealtime s[52:53]"); e("  s_load_dwordx2 s[20:21], s[0:1], 64"); e("  s_mov_b32 s22, 0x100000")
        e("  s_getreg_b32 s54, hwreg(HW_REG_XCC_ID)"); e("  s_getreg_b32 s55, hwreg(HW_REG_HW_ID)"); e("  s_waitcnt lgkmcnt(0)")
        for i, sr in enumerate([50, 56, 58, 52, 54, 55, 60, 62]): e("  v_mov_b32 v%d, s%d" % (16 + i, sr))
        e("  s_mul_i32 s47, s2, %d" % W); e("  s_add_u32 s47, s47, s40"); e("  s_lshl_b32 s47, s47, 5")
        e("  v_lshlrev_b32 v12, 2, v0"); e("  s_lshl_b32 s46, s47, 3"); e("  s_add_u32 s46, s46, 0x20000")
        e("  buffer_store_dword v%d, v12, s[20:23], s46 offen" % vSt)
        e("  v_cmp_eq_u32 vcc, 0, v0"); e("  s_and_saveexec_b64 s[48:49], vcc")
        e("  buffer_store_dwordx4 v[16:19], off, s[20:23], s47"); e("  buffer_store_dwordx4 v[20:23], off, s[20:23], s47 offset:16")
    e("L_end:")
    e("  s_endpgm")
    cm("helper wave: tree token partial (m = score + mask bias, l = 1, O = v_tree)")
    e("L_helper:")
    if hdelay: e("  s_barrier", "keep out of the way while the streaming waves start up")
    if fast: qprep()
    e("  s_add_u32 s%d, s4, s%d" % (sQ, sIt))
    e("  s_addc_u32 s%d, s5, 0" % (sQ + 1))
    if warm:
        e("  s_mov_b32 s%d, s16" % sO_)
        e("  s_mov_b32 s%d, s17" % (sO_ + 1))
        e("  s_mov_b32 s%d, 0" % (sO_ + 2), "zero records: the dry pass below stores nothing")
        e("  s_mov_b32 s%d, 0x00020000" % (sO_ + 3))
    e("  v_mov_b32 v%d, v%d" % (vKo, vA))
    e("  v_lshlrev_b32 v%d, 6, v%d" % (vKo + 1, vY))
    lds_addrs()
    e("  s_mov_b32 s%d, %s" % (sC, f32hex(c)))
    if warm:
        for jj in range(4): e("  v_mov_b32 v%d, v%d" % (vKr + jj, vVoff))
        e("  s_mov_b32 s%d, 0x05040100" % sSelLo)
        e("  s_mov_b32 s%d, 0x07060302" % sSelHi)
        e("  s_mov_b32 s%d, 1" % sRet)
        e("  s_branch L_tail", "dry pass through the tail code (instruction cache), no global access")
    e("L_help2:")
    e("  s_mov_b32 s%d, 2" % sRet)
    if warm:
        e("  v_mov_b32 v%d, v%d" % (vA, vKo))
        for i in range(0, 16, 2): e("  v_mov_b64 v[%d:%d], 0" % (vQ + i, vQ + i + 1))
    qloads()
    e("  s_lshl_b32 s%d, s2, 8" % sTmp)
    e("  s_add_u32 s%d, s10, s%d" % (sT, sTmp))
    e("  s_addc_u32 s%d, s11, 0" % (sT + 1))
    e("  s_mov_b32 s%d, 256" % (sT + 2))
    e("  s_mov_b32 s%d, 0x00020000" % (sT + 3))
    for j in range(4):
        e("  buffer_load_dwordx4 v[%d:%d], v%d, s[%d:%d], 0 offen offset:%d" % (vT + 4 * j, vT + 4 * j + 3, vA, sT, sT + 3, j * 64))
    e("  s_add_u32 s%d, s12, s%d" % (sT, sTmp))
    e("  s_addc_u32 s%d, s13, 0" % (sT + 1))
    for r in range(4):
        e("  buffer_load_dwordx4 v[%d:%d], v%d, s[%d:%d], 0 offen offset:%d" % (vU + 4 * r, vU + 4 * r + 3, vKo + 1, sT, sT + 3, r * 16))
    e("  s_mov_b32 s%d, s14" % sT)
    e("  s_mov_b32 s%d, s15" % (sT + 1))
    e("  s_mov_b32 s%d, 64" % (sT + 2))
    e("  s_lshr_b32 s%d, s2, 3" % sTmp)
    e("  s_lshl_b32 s%d, s%d, 1" % (sTmp, sTmp))
    e("  buffer_load_ushort v%d, off, s[%d:%d], s%d" % (vNM, sT, sT + 3, sTmp), "tree_mask[b]")
    e("  v_mov_b32 v%d, %s" % (vM, f32hex(-3.0e38)))
    e("  s_waitcnt vmcnt(0)")
    for j in range(4):
        e("  v_mfma_f32_16x16x32_bf16 v[%d:%d], v[%d:%d], v[%d:%d], %s" %
          (vS, vS + 3, vT + 4 * j, vT + 4 * j + 3, vQ + 4 * j, vQ + 4 * j + 3, "0" if j == 0 else "v[%d:%d]" % (vS, vS + 3)))
    for r in range(4):
        for w in range(4):
            e("  v_lshlrev_b32 v%d, 16, v%d" % (vO + (2 * w) * 4 + r, vU + 4 * r + w))
            e("  v_and_b32 v%d, 0xffff0000, v%d" % (vO + (2 * w + 1) * 4 + r, vU + 4 * r + w))
    e("  v_lshlrev_b32 v%d, 16, v%d" % (vNM, vNM))
    e("  v_sub_f32 v%d, 1.0, v%d" % (vNM, vNM))
    e("  v_mul_f32 v%d, %s, v%d" % (vNM, f32hex(-1.0e9 * math.log2(math.e)), vNM), "(1-mask) * -1e9, log2 units")
    e("  v_fma_f32 v%d, v%d, s%d, v%d" % (vX, vS, sC, vNM))
    e("  v_cmp_gt_u32 vcc, 16, v0")
    e("  v_mov_b32 v%d, 1.0" % vLa)
    e("  s_nop 0")
    e("  v_cndmask_b32 v%d, v%d, v%d, vcc" % (vM, vM, vX))
    xmax(vM, vX)
    e("  s_branch L_xchg")
    L.append('.section .rodata,"a"'); L.append(".p2align 6"); L.append(".amdhsa_kernel %s" % KNAME)
    L.append("  .amdhsa_next_free_vgpr %d" % nv); L.append("  .amdhsa_next_free_sgpr %d" % (96 if ga else 80)); L.append("  .amdhsa_accum_offset %d" % ((nv + 3) // 4 * 4))
    L.append("  .amdhsa_group_segment_fixed_size 0"); L.append("  .amdhsa_kernarg_size 72"); L.append("  .amdhsa_user_sgpr_count 2")
    L.append("  .amdhsa_user_sgpr_kernarg_segment_ptr 1"); L.append("  .amdhsa_system_sgpr_workgroup_id_x 1"); L.append(".end_amdhsa_kernel")
    out = []
    i = 0
    while i < len(L):
        if (i + 3 < len(L) and L[i].strip().startswith("s_waitcnt vmcnt") and " m0," in L[i + 1]
                and L[i + 2].strip() == "s_nop 0" and L[i + 3].rstrip().endswith(" lds")):
            out += [L[i + 1], L[i], L[i + 3]]
            i += 4
        else:
            out.append(L[i]); i += 1
    return "\n".join(out) + "\n"
```
